```python
import torch

def _softmax(x, axis=-1):
    return torch.softmax(x, dim=axis)
def _gelu(x):
    return torch.nn.functional.gelu(x, approximate="tanh")
def _silu(x):
    return torch.nn.functional.silu(x)
def _sigmoid(x):
    return torch.sigmoid(x)
def _layernorm(x, axis=-1, eps=1e-5):
    m = x.mean(dim=axis, keepdim=True)
    v = x.var(dim=axis, keepdim=True, unbiased=False)
    return (x - m) / torch.sqrt(v + eps)
def _scatter_add(tgt, idx, src, axis=0):
    return tgt.clone().index_add_(axis, idx, src)
def _segment_sum(src, seg, n):
    out = torch.zeros((n,) + src.shape[1:], dtype=src.dtype)
    return out.index_add_(0, seg, src)
def _pad(x, pw):
    flat = tuple(v for pair in reversed(pw) for v in pair)
    return torch.nn.functional.pad(x, flat)

kernel_name = 'standalone__linear_kernel_rfa__decode'

def setup_inputs():

    _w = (lambda a: (lambda t: t.to(torch.bfloat16) if t.is_floating_point() else t)(torch.as_tensor(a)))
    B, H, Sq, Sk, D, M = 4, 32, 1, 8192, 128, 16
    return {
        "q": _w((lambda *s: torch.randn(*s, dtype=torch.bfloat16) * 0.4)(B, H, Sq, D)),
        "k": _w((lambda *s: torch.randn(*s, dtype=torch.bfloat16) * 1.6)(B, H, Sk, D)),
        "v": _w((lambda *s: torch.randn(*s, dtype=torch.bfloat16) * 1.6)(B, H, Sk, D)),
        "omega": _w((lambda *s: torch.randn(*s, dtype=torch.bfloat16) * 1.6)(M, D)),
    }

def reference(q, k, v, omega):
    d = q.shape[-1]
    m = omega.shape[0]
    scale = float(d) ** -0.25
    qs = q * scale
    ks = k * scale
    q_proj = torch.einsum("bhsd,md->bhsm", qs, omega)
    k_proj = torch.einsum("bhsd,md->bhsm", ks, omega)
    q_sq = 0.5 * torch.einsum("bhsd,bhsd->bhs", qs, qs)[..., None]
    k_sq = 0.5 * torch.einsum("bhsd,bhsd->bhs", ks, ks)[..., None]
    inv_sqrt_m = float(m) ** -0.5
    phi_q = torch.exp(q_proj - q_sq) * inv_sqrt_m + 1e-6
    phi_k = torch.exp(k_proj - k_sq) * inv_sqrt_m + 1e-6
    kv = torch.einsum("bhsm,bhsd->bhmd", phi_k, v)
    z  = torch.einsum("bhsm->bhm", phi_k)
    num = torch.einsum("bhqm,bhmd->bhqd", phi_q, kv)
    den = torch.einsum("bhqm,bhm->bhq", phi_q, z)[..., None] + 1e-6
    return num / den
```

```python
import sys, struct
KN="standalone__linear_kernel_rfa__decode_kernel"
def f2u(x): return struct.unpack("<I",struct.pack("<f",x))[0]
SCALE=0x3e9837f0
LOG2E=f2u(1.4426950408889634)
EPSBF=0x35860000
HDR="""; RFA (FAVOR+) linear-attention decode, B=4 H=32 Sk=8192 D=128 M=16, bf16.
"""
def gen(S=2, W=8, NB=2, pol="nt", kpol=None, stamp=0, prio=0):
    kpol = pol if kpol is None else kpol
    NWG=128*S
    WGB=8192*256//S
    NT=WGB//4096//W
    assert NT*W*4096==WGB and NT%NB==0
    lds=W*64*16
    o=[]; A=o.append
    A(HDR.rstrip())
    A(f"; @launch grid=({NWG},1,1) block=({W*64},1,1) lds={lds}")
    A('.amdgcn_target "amdgcn-amd-amdhsa--gfx950"')
    A(".text"); A(f".globl {KN}"); A(".p2align 8"); A(f".type {KN},@function"); A(f"{KN}:")
    vKA,vVA=1,2
    vMA,vMB=3,4
    vL=5
    CN=6
    ON=8
    PH=10
    BT=12
    P=16; G=20; PQ=24; Z=28
    T=32
    U=40
    OM=48
    AC=64
    BUF=96
    def KB(b): return BUF+32*b
    def VB(b): return BUF+32*b+16
    nv=BUF+32*NB
    sK,sV,sX="s[20:23]","s[24:27]","s[28:31]"
    sOFF="s32"; sCNT="s33"; sHI="s34"; sL2E="s35"; sEPS="s36"; sPL="s37"; sPHI="s38"; sW="s3"
    sSC="s[40:41]"
    def vr(a,n): return f"v[{a}:{a+n-1}]"
    A(f"s_cmp_ge_u32 s2, {NWG}"); A("s_cbranch_scc1 L_end")
    A("s_load_dwordx8 s[4:11], s[0:1], 0")
    A("s_load_dwordx4 s[12:15], s[0:1], 32")
    A("s_load_dwordx2 s[16:17], s[0:1], 48")
    if stamp: A("s_memrealtime s[48:49]")
    A(f"v_lshrrev_b32 v{vKA}, 6, v0"); A(f"v_and_b32 v{vL}, 63, v0")
    A(f"v_readfirstlane_b32 {sW}, v{vKA}")
    A(f"v_and_b32 v{U}, 3, v0"); A(f"v_bfe_u32 v{U+1}, v0, 2, 2"); A(f"v_bfe_u32 v{U+2}, v0, 4, 2")
    A(f"v_lshlrev_b32 v{U}, 10, v{U}"); A(f"v_lshl_add_u32 v{U}, v{U+1}, 8, v{U}"); A(f"v_lshl_add_u32 v{vKA}, v{U+2}, 4, v{U}")
    A(f"v_lshlrev_b32 v{vVA}, 4, v{vL}")
    A(f"v_and_b32 v{U+3}, 15, v0"); A(f"v_lshlrev_b32 v{U+4}, 4, v{U+2}"); A(f"v_lshl_add_u32 v{U+3}, v{U+3}, 8, v{U+4}")
    A(f"s_lshl_b32 {sOFF}, {sW}, 12")
    A(f"s_mul_i32 s18, s2, {WGB}")
    A(f"s_mov_b32 s22, {WGB}"); A("s_mov_b32 s23, 0x00020000"); A(f"s_mov_b32 s26, {WGB}"); A("s_mov_b32 s27, 0x00020000")
    A("s_mov_b32 s30, 4096"); A("s_mov_b32 s31, 0x00020000")
    A(f"s_mov_b32 s46, 32768"); A("s_mov_b32 s47, 0x00020000")
    if S>1: A(f"s_lshr_b32 s19, s2, {S.bit_length()-1}")
    else: A("s_mov_b32 s19, s2")
    A("s_lshl_b32 s39, s19, 8")
    A("s_waitcnt lgkmcnt(0)")
    A("s_add_u32 s20, s6, s18"); A("s_addc_u32 s21, s7, 0")
    A("s_add_u32 s24, s8, s18"); A("s_addc_u32 s25, s9, 0")
    A("s_mov_b32 s28, s10"); A("s_mov_b32 s29, s11")
    A("s_mov_b32 s44, s4"); A("s_mov_b32 s45, s5")
    def loadK(b,j): A(f"buffer_load_dwordx4 {vr(KB(b)+4*j,4)}, v{vKA}, {sK}, {sOFF} offen offset:{64*j} {kpol}")
    def loadV(b,e): A(f"buffer_load_dwordx4 {vr(VB(b)+4*e,4)}, v{vVA}, {sV}, {sOFF} offen offset:{1024*e} {pol}")
    for j in range(4): A(f"buffer_load_dwordx4 {vr(OM+4*j,4)}, v{U+3}, {sX}, 0 offen offset:{64*j}")
    for j in range(4): A(f"buffer_load_dwordx4 {vr(AC+4*j,4)}, v{U+4}, s[44:47], s39 offen offset:{64*j}")
    for b in range(NB):
        for j in range(4): loadK(b,j)
        for e in range(4): loadV(b,e)
        A(f"s_add_u32 {sOFF}, {sOFF}, {W*4096}")
    if prio: A(f"s_setprio {prio}")
    A(f"s_mov_b32 {sHI}, 0xffff0000"); A(f"s_mov_b32 {sL2E}, {LOG2E:#x}"); A(f"s_mov_b32 {sEPS}, {EPSBF:#x}")
    A(f"s_mov_b32 {sPL}, 0x05040100"); A(f"s_mov_b32 {sPHI}, 0x07060302")
    A(f"s_mov_b32 s40, {SCALE:#x}"); A(f"s_mov_b32 s41, {SCALE:#x}")
    A(f"v_mov_b32 v{CN}, 0xbf00bf00"); A(f"v_mov_b32 v{CN+1}, 0xbf00bf00")
    A(f"v_mov_b32 v{ON}, 0x3f803f80"); A(f"v_mov_b32 v{ON+1}, 0x3f803f80")
    A(f"v_and_b32 v{U}, 15, v0"); A(f"v_lshlrev_b32 v{U+1}, 2, v{U+2}"); A(f"v_sub_u32 v{U}, v{U}, v{U+1}")
    A(f"v_mov_b32 v{U+1}, 0xffff"); A(f"v_mov_b32 v{U+2}, {sHI}")
    A(f"v_mov_b32 v{vMA}, 0"); A(f"v_mov_b32 v{vMB}, 0")
    for r,(dst,src) in enumerate([(vMA,U+1),(vMA,U+2),(vMB,U+1),(vMB,U+2)]):
        A(f"v_cmp_eq_u32 vcc, {r}, v{U}"); A("s_nop 1"); A(f"v_cndmask_b32 v{dst}, v{dst}, v{src}, vcc")
    def scale4(src, dst, mid=None):
        for q in range(4):
            A(f"v_lshlrev_b32 v{U+2*q}, 16, v{src+q}"); A(f"v_and_b32 v{U+2*q+1}, {sHI}, v{src+q}")
        if mid: mid()
        for q in range(4): A(f"v_pk_mul_f32 {vr(U+2*q,2)}, {vr(U+2*q,2)}, {sSC}")
        for q in range(4): A(f"v_cvt_pk_bf16_f32 v{dst+q}, v{U+2*q}, v{U+2*q+1}")
    def rnd4(R):
        A(f"v_cvt_pk_bf16_f32 v{U}, v{R}, v{R+1}"); A(f"v_cvt_pk_bf16_f32 v{U+1}, v{R+2}, v{R+3}")
        A(f"v_lshlrev_b32 v{R}, 16, v{U}"); A(f"v_and_b32 v{R+1}, {sHI}, v{U}")
        A(f"v_lshlrev_b32 v{R+2}, 16, v{U+1}"); A(f"v_and_b32 v{R+3}, {sHI}, v{U+1}")
    def phi_tail(R):
        rnd4(R)
        for r in range(4): A(f"v_mul_f32 v{R+r}, {sL2E}, v{R+r}")
        for r in range(4): A(f"v_exp_f32 v{R+r}, v{R+r}")
        A("s_nop 0")
        rnd4(R)
        for r in range(4): A(f"v_fmaak_f32 v{R+r}, v{R+r}, v0, {EPSBF:#x}")
    A(f"s_waitcnt vmcnt({8*NB})")
    for j in range(4):
        scale4(AC+4*j, T+4*(j%2))
        A("s_nop 1")
        c = "0" if j==0 else vr(PQ,4)
        A(f"v_mfma_f32_16x16x32_bf16 {vr(PQ,4)}, {vr(OM+4*j,4)}, {vr(T+4*(j%2),4)}, {c}")
        c = "0" if j==0 else vr(G,4)
        A(f"v_mfma_f32_16x16x32_bf16 {vr(G,4)}, {vr(T+4*(j%2),4)}, {vr(T+4*(j%2),4)}, {c}")
    for i in range(32): A(f"v_mov_b32 v{AC+i}, 0")
    for i in range(4): A(f"v_mov_b32 v{Z+i}, 0")
    rnd4(PQ); rnd4(G)
    for r in range(4): A(f"v_fma_f32 v{PQ+r}, v{G+r}, -0.5, v{PQ+r}")
    A(f"v_mov_b32 v0, 0x3e800000")
    phi_tail(PQ); rnd4(PQ)
    A(f"s_mov_b32 {sCNT}, {NT//NB}")
    A(".p2align 3")
    A("L_loop:")
    for b in range(NB):
        for j in range(4):
            A(f"s_waitcnt vmcnt({8*NB-1})")
            t=T+4*(j%2)
            scale4(KB(b)+4*j, t, lambda: loadK(b,j))
            A("s_nop 1")
            c = "0" if j==0 else vr(G,4)
            A(f"v_mfma_f32_16x16x32_bf16 {vr(G,4)}, {vr(t,4)}, {vr(t,4)}, {c}")
            c = "0" if j==0 else vr(P,4)
            A(f"v_mfma_f32_16x16x32_bf16 {vr(P,4)}, {vr(t,4)}, {vr(OM+4*j,4)}, {c}")
        A("s_nop 6")
        A(f"v_cvt_pk_bf16_f32 v{PH}, v{G}, v{G+1}"); A(f"v_cvt_pk_bf16_f32 v{PH+1}, v{G+2}, v{G+3}")
        A(f"v_and_b32 v{PH}, v{PH}, v{vMA}"); A(f"v_and_b32 v{PH+1}, v{PH+1}, v{vMB}")
        rnd4(P)
        A("s_nop 1")
        A(f"v_mfma_f32_16x16x16_bf16 {vr(P,4)}, {vr(PH,2)}, {vr(CN,2)}, {vr(P,4)}")
        A("s_nop 7")
        phi_tail(P)
        A(f"v_cvt_pk_bf16_f32 v{PH}, v{P}, v{P+1}"); A(f"v_cvt_pk_bf16_f32 v{PH+1}, v{P+2}, v{P+3}")
        A(f"s_waitcnt vmcnt({8*NB-4})")
        V=VB(b)
        def perm(jj):
            bt=BT+2*(jj%2); q=jj>>1; sel=sPHI if jj&1 else sPL
            A(f"v_perm_b32 v{bt}, v{V+4+q}, v{V+q}, {sel}")
            A(f"v_perm_b32 v{bt+1}, v{V+12+q}, v{V+8+q}, {sel}")
        perm(0)
        A(f"v_mfma_f32_16x16x16_bf16 {vr(Z,4)}, {vr(PH,2)}, {vr(ON,2)}, {vr(Z,4)}")
        for jj in range(8):
            if jj<7: perm(jj+1)
            else:
                for e in range(4): loadV(b,e)
            bt=BT+2*(jj%2)
            A(f"v_mfma_f32_16x16x16_bf16 {vr(AC+4*jj,4)}, {vr(PH,2)}, {vr(bt,2)}, {vr(AC+4*jj,4)}")
        A(f"s_add_u32 {sOFF}, {sOFF}, {W*4096}")
    A(f"s_sub_u32 {sCNT}, {sCNT}, 1"); A(f"s_cmp_lg_u32 {sCNT}, 0"); A("s_cbranch_scc1 L_loop")
    if stamp: A("s_memrealtime s[50:51]")
    A("s_nop 7")
    N=T
    for jj in range(8):
        A(f"v_mul_f32 v{N+jj}, v{PQ}, v{AC+4*jj}")
    A(f"v_mul_f32 v{U}, v{PQ}, v{Z}")
    for r in range(1,4):
        for jj in range(8): A(f"v_fmac_f32 v{N+jj}, v{PQ+r}, v{AC+4*jj+r}")
        A(f"v_fmac_f32 v{U}, v{PQ+r}, v{Z+r}")
    A(f"v_mov_b32 v{U+1}, v{U}")
    A("s_nop 1")
    for jj in range(4): A(f"v_permlane32_swap_b32 v{N+jj}, v{N+jj+4}")
    A(f"v_permlane32_swap_b32 v{U}, v{U+1}")
    A("s_nop 1")
    for jj in range(4): A(f"v_add_f32 v{N+jj}, v{N+jj}, v{N+jj+4}")
    A(f"v_add_f32 v{U}, v{U}, v{U+1}")
    A(f"v_mov_b32 v{U+1}, v{U}")
    A("s_nop 1")
    for jj in range(2): A(f"v_permlane16_swap_b32 v{N+jj}, v{N+jj+2}")
    A(f"v_permlane16_swap_b32 v{U}, v{U+1}")
    A("s_nop 1")
    for jj in range(2): A(f"v_add_f32 v{N+jj}, v{N+jj}, v{N+jj+2}")
    A(f"v_add_f32 v{N+2}, v{U}, v{U+1}")
    A(f"v_mov_b32 v{N+3}, 0")
    if W>1:
        A(f"s_lshl_b32 s18, {sW}, 10")
        A(f"v_add_u32 v{U}, s18, v{vVA}")
        A(f"ds_write_b128 v{U}, {vr(N,4)}")
        A("s_waitcnt lgkmcnt(0)")
        A("s_barrier")
        A(f"s_cmp_lg_u32 {sW}, 0"); A("s_cbranch_scc1 L_fin")
        if W>8: A("s_waitcnt vmcnt(0)")
        for w in range(1,W): A(f"ds_read_b128 {vr(AC+4*((w-1)%16),4)}, v{vVA} offset:{1024*w}") if w<=8 else A(f"ds_read_b128 {vr(BUF+4*(w-9),4)}, v{vVA} offset:{1024*w}")
        for w in range(1,W):
            src = AC+4*(w-1) if w<=8 else BUF+4*(w-9)
            A(f"s_waitcnt lgkmcnt({min(15,W-1-w)})")
            for i in range(3): A(f"v_add_f32 v{N+i}, v{N+i}, v{src+i}")
    if S>1:
        A("s_mov_b32 s28, s16"); A("s_mov_b32 s29, s17"); A(f"s_mov_b32 s30, {NWG*1024}")
        A("s_lshl_b32 s18, s2, 10")
        A(f"buffer_store_dwordx4 {vr(N,4)}, v{vVA}, {sX}, s18 offen sc1")
        A("s_mov_b32 s44, s14"); A("s_mov_b32 s45, s15"); A("s_mov_b32 s46, 256")
        A("s_lshr_b32 s42, s19, 1"); A("s_lshl_b32 s42, s42, 2")
        A("s_and_b32 s43, s19, 1"); A("s_lshl_b32 s43, s43, 4")
        A("s_lshl_b32 s39, 1, s43")
        A(f"v_mov_b32 v{U}, s39"); A(f"v_mov_b32 v{U+1}, 0")
        A("s_waitcnt vmcnt(0)")
        A("s_mov_b64 exec, 1")
        A(f"buffer_atomic_add v{U}, v{U+1}, s[44:47], s42 offen sc0")
        A("s_waitcnt vmcnt(0)")
        A(f"v_readfirstlane_b32 s39, v{U}")
        A("s_mov_b64 exec, -1")
        A("s_lshr_b32 s39, s39, s43"); A("s_and_b32 s39, s39, 0xffff")
        A(f"s_cmp_lg_u32 s39, {S-1}"); A("s_cbranch_scc1 L_fin")
        if S==2:
            A("s_xor_b32 s18, s18, 1024")
            A(f"buffer_load_dwordx4 {vr(AC,4)}, v{vVA}, {sX}, s18 offen sc1")
            A("s_waitcnt vmcnt(0)")
            for i in range(3): A(f"v_add_f32 v{N+i}, v{N+i}, v{AC+i}")
        else:
            A(f"s_lshl_b32 s18, s19, {10+S.bit_length()-1}")
            for s in range(S):
                if s*1024>=4096 and (s*1024)%4096==0: A("s_add_u32 s18, s18, 4096")
                A(f"buffer_load_dwordx4 {vr(AC+4*s,4)}, v{vVA}, {sX}, s18 offen offset:{(s*1024)%4096} sc1")
            A("s_waitcnt vmcnt(0)")
            for i in range(3): A(f"v_add_f32 v{N+i}, v{AC+i}, v{AC+4+i}")
            for s in range(2,S):
                for i in range(3): A(f"v_add_f32 v{N+i}, v{N+i}, v{AC+4*s+i}")
    rnd4(N)
    A(f"v_add_f32 v{N+2}, {sEPS}, v{N+2}")
    A(f"v_cvt_pk_bf16_f32 v{N+2}, v{N+2}, v{N+2}"); A(f"v_lshlrev_b32 v{N+2}, 16, v{N+2}")
    D=N+2
    for i in range(2):
        n=N+i; a,b2,c,d2,e=U,U+1,U+2,U+3,U+4
        A(f"v_div_scale_f32 v{a}, s[42:43], v{D}, v{D}, v{n}")
        A(f"v_div_scale_f32 v{b2}, vcc, v{n}, v{D}, v{n}")
        A(f"v_rcp_f32 v{c}, v{a}")
        A("s_nop 0")
        A(f"v_fma_f32 v{d2}, -v{a}, v{c}, 1.0")
        A(f"v_fma_f32 v{c}, v{d2}, v{c}, v{c}")
        A(f"v_mul_f32 v{d2}, v{b2}, v{c}")
        A(f"v_fma_f32 v{e}, -v{a}, v{d2}, v{b2}")
        A(f"v_fma_f32 v{d2}, v{e}, v{c}, v{d2}")
        A(f"v_fma_f32 v{a}, -v{a}, v{d2}, v{b2}")
        A(f"v_div_fmas_f32 v{a}, v{a}, v{c}, v{d2}")
        A(f"v_div_fixup_f32 v{n}, v{a}, v{D}, v{n}")
    A(f"v_cvt_pk_bf16_f32 v{N}, v{N}, v{N+1}")
    A(f"v_and_b32 v{U}, 15, v{vL}"); A(f"v_lshrrev_b32 v{U+1}, 4, v{vL}")
    A(f"v_lshlrev_b32 v{U}, 4, v{U}"); A(f"v_lshl_add_u32 v{U}, v{U+1}, 2, v{U}")
    A("s_mov_b32 s28, s12"); A("s_mov_b32 s29, s13"); A("s_mov_b32 s30, 32768")
    A("s_lshl_b32 s18, s19, 8")
    A(f"buffer_store_dword v{N}, v{U}, {sX}, s18 offen")
    A("L_fin:")
    if stamp:
        A("s_waitcnt vmcnt(0)")
        A("s_memrealtime s[52:53]")
        A("s_getreg_b32 s54, hwreg(HW_REG_XCC_ID)")
        A("s_getreg_b32 s55, hwreg(HW_REG_HW_ID)")
        A("s_waitcnt lgkmcnt(0)")
        A("s_add_u32 s28, s16, 0x20000000"); A("s_addc_u32 s29, s17, 0"); A("s_mov_b32 s30, 0x1000000")
        A(f"s_mul_i32 s18, s2, {W}"); A(f"s_add_u32 s18, s18, {sW}"); A("s_lshl_b32 s18, s18, 5")
        for i in range(8): A(f"v_mov_b32 v{AC+i}, s{48+i}")
        A(f"v_mov_b32 v{U}, 0")
        A(f"buffer_store_dwordx4 {vr(AC,4)}, v{U}, {sX}, s18 offen")
        A(f"buffer_store_dwordx4 {vr(AC+4,4)}, v{U}, {sX}, s18 offen offset:16")
    A("L_end:"); A("s_endpgm")
    acc=min(256,(nv+3)//4*4)
    A('.section .rodata,"a"'); A(".p2align 6"); A(f".amdhsa_kernel {KN}")
    A(f"  .amdhsa_next_free_vgpr {nv}"); A("  .amdhsa_next_free_sgpr 64"); A(f"  .amdhsa_accum_offset {acc}")
    A("  .amdhsa_group_segment_fixed_size 0"); A("  .amdhsa_kernarg_size 56"); A("  .amdhsa_user_sgpr_count 2"); A("  .amdhsa_user_sgpr_kernarg_segment_ptr 1"); A("  .amdhsa_system_sgpr_workgroup_id_x 1")
    A("  .amdhsa_float_denorm_mode_32 3")
    A(".end_amdhsa_kernel")
    return "\n".join(o)+"\n"
if __name__=="__main__":
    from build import build
    import os
    os.makedirs("k",exist_ok=True)
    names=[]
    for spec in sys.argv[1:]:
        kw={}
        for p in spec.split(","):
            k,v=p.split("=")
            kw[k]= int(v) if v.isdigit() else v.replace("+"," ").replace("none","")
        name="k/"+spec.replace("=","").replace(",","_").replace("+","")
        open(name+".s","w").write(gen(**kw))
        build(name+".s")
        names.append(name)
    print(" ".join(names))
```

```python
import sys, struct
KN="standalone__linear_kernel_rfa__decode_kernel"
def f2u(x): return struct.unpack("<I",struct.pack("<f",x))[0]
SCALE=0x3e9837f0
LOG2E=f2u(1.4426950408889634)
EPSBF=0x35860000
HDR="""; RFA (FAVOR+) linear-attention decode, B=4 H=32 Sk=8192 D=128 M=16, bf16.
"""
def gen(LV="211", pol="nt", kpol=None, stamp=0, trace=0, spincap=0, omlds=1, part="x4", opol="", peel=1, early=0, fake=None, stag=0, kpos=0, cst=256, probe=0):
    kpol = pol if kpol is None else kpol
    W=4; NWG=256; MEM=8; NTH=512
    LV=[int(c,16) for c in str(LV)] if str(LV)!="0" else []
    assert all(z<7 for z in LV)
    ST=64-sum(LV)
    NL=len(LV); assert NL<=4
    bases=[]; b=MEM*ST
    for z in LV: bases.append(b); b+=MEM*z
    assert b==NTH
    SZT=sum(z<<(8*i) for i,z in enumerate(LV))
    BST=sum(((x-MEM*ST))<<(8*i) for i,x in enumerate(bases))
    CTR=0x200000
    PB={"x4":1024,"x3":768,"x2":512}[part]
    o=[]; A=o.append
    A(HDR.rstrip())
    A(f"; @launch grid=({NWG},1,1) block=({W*64},1,1) lds={4096 if omlds else 0}")
    A('.amdgcn_target "amdgcn-amd-amdhsa--gfx950"')
    A(".text"); A(f".globl {KN}"); A(".p2align 8"); A(f".type {KN},@function"); A(f"{KN}:")
    vKA,vVA=1,2
    vMA,vMB=3,4
    vL=5
    CN=6; ON=8; PH=10; BT=12
    P=16; G=20; PQ=24; Z=28
    T=32; U=40; OM=48; AC=64
    KB=96; VB=112; QB=128
    vQA=144; vPA=145; TR=146
    nv=147 if trace else 146
    sK,sV,sX="s[20:23]","s[24:27]","s[28:31]"
    sOFF="s32"; sT="s33"; sHI="s34"; sL2E="s35"; sEPS="s36"; sPL="s37"; sPHI="s38"; sW="s3"
    sSC="s[40:41]"
    sR="s42"; sS="s43"; sTK="s64"; sFL="s65"; sH="s19"; sM="s66"; sCT="s[68:69]"; sFA="s[70:71]"; sFB="s67"; sN="s72"
    def vr(a,n): return f"v[{a}:{a+n-1}]"
    def ev(i):
        if trace: A(f"s_memrealtime s[{80+2*i}:{81+2*i}]")
    A(f"s_cmp_ge_u32 s2, {NWG}"); A("s_cbranch_scc1 L_end")
    A("s_load_dwordx8 s[4:11], s[0:1], 0")
    A("s_load_dwordx4 s[12:15], s[0:1], 32")
    A("s_load_dwordx2 s[16:17], s[0:1], 48")
    if stamp: A("s_memrealtime s[48:49]"); A("s_memtime s[56:57]")
    A(f"v_lshrrev_b32 v{vKA}, 6, v0"); A(f"v_and_b32 v{vL}, 63, v0")
    A(f"v_readfirstlane_b32 {sW}, v{vKA}")
    A(f"v_and_b32 v{U}, 3, v0"); A(f"v_bfe_u32 v{U+1}, v0, 2, 2"); A(f"v_bfe_u32 v{U+2}, v0, 4, 2")
    A(f"v_lshlrev_b32 v{U}, 10, v{U}"); A(f"v_lshl_add_u32 v{U}, v{U+1}, 8, v{U}"); A(f"v_lshl_add_u32 v{vKA}, v{U+2}, 4, v{U}")
    A(f"v_lshlrev_b32 v{vVA}, 4, v{vL}")
    if fake=="lin": A(f"v_mov_b32 v{vKA}, v{vVA}")
    if fake=="seg128":
        A(f"v_and_b32 v{vKA}, 7, v0"); A(f"v_lshlrev_b32 v{vKA}, 8, v{vKA}"); A(f"v_lshl_add_u32 v{vKA}, v{U+2}, 4, v{vKA}")
        A(f"v_bfe_u32 v{U}, v0, 3, 1"); A(f"v_lshl_add_u32 v{vKA}, v{U}, 6, v{vKA}")
    A(f"v_and_b32 v{U+3}, 15, v0"); A(f"v_lshlrev_b32 v{vQA}, 4, v{U+2}"); A(f"v_lshl_add_u32 v{U+3}, v{U+3}, 8, v{vQA}")
    A(f"s_lshr_b32 {sH}, s2, 3"); A(f"s_lshl_b32 {sH}, {sH}, 2"); A(f"s_add_u32 {sH}, {sH}, {sW}")
    A(f"s_and_b32 {sM}, s2, 7")
    A(f"s_lshl_b32 s18, {sH}, 21")
    A(f"s_lshl_b32 {sOFF}, {sM}, 12")
    A("s_mov_b32 s22, 0x200000"); A("s_mov_b32 s23, 0x00020000"); A("s_mov_b32 s26, 0x200000"); A("s_mov_b32 s27, 0x00020000")
    A("s_mov_b32 s30, 4096"); A("s_mov_b32 s31, 0x00020000")
    A(f"s_lshl_b32 s39, {sW}, 6")
    A("s_waitcnt lgkmcnt(0)"); ev(7)
    if probe:
        A("s_cmp_lg_u32 s2, 0"); A("s_cbranch_scc1 L_noprobe"); A(f"s_cmp_lg_u32 {sW}, 0"); A("s_cbranch_scc1 L_noprobe")
        A("s_mov_b32 s44, s14"); A("s_mov_b32 s45, s15"); A("s_mov_b32 s46, 256"); A("s_mov_b32 s47, 0x00020000")
        A("s_mov_b32 s20, s6"); A("s_mov_b32 s21, s7"); A("s_mov_b32 s24, s8"); A("s_mov_b32 s25, s9")
        A(f"v_mov_b32 v{AC}, 0")
        n=0
        for srd in (sK,sV):
            A(f"buffer_load_dword v{AC+1}, v{AC}, {srd}, 0 offen offset:4000 nt"); A("s_waitcnt vmcnt(0)")
            for base in (0,8192,16384+4096,24576+4096):
                A("s_mov_b32 s52, -1")
                for i in range(3):
                    A(f"s_mov_b32 s53, {base+i*1024}")
                    A("s_memtime s[48:49]"); A("s_waitcnt lgkmcnt(0)")
                    A(f"buffer_load_dword v{AC+1}, v{AC}, {srd}, s53 offen nt"); A("s_waitcnt vmcnt(0)")
                    A("s_memtime s[50:51]"); A("s_waitcnt lgkmcnt(0)")
                    A("s_sub_u32 s50, s50, s48"); A("s_min_u32 s52, s52, s50")
                A(f"v_mov_b32 v{AC+2}, s52")
                A(f"buffer_store_dword v{AC+2}, v{AC}, s[44:47], 0 offen offset:{16+4*n}"); A("s_waitcnt vmcnt(0)")
                n+=1
        A("s_getreg_b32 s52, hwreg(HW_REG_XCC_ID)"); A(f"v_mov_b32 v{AC+2}, s52"); A(f"buffer_store_dword v{AC+2}, v{AC}, s[44:47], 0 offen offset:{16+4*n}"); A("s_waitcnt vmcnt(0)"); n+=1
        for r in ("s6","s8","s16"):
            A(f"s_lshr_b32 s52, {r}, 21"); A(f"v_mov_b32 v{AC+2}, s52"); A(f"buffer_store_dword v{AC+2}, v{AC}, s[44:47], 0 offen offset:{16+4*n}"); A("s_waitcnt vmcnt(0)"); n+=1
        A("L_noprobe:")
    A("s_mov_b32 s28, s10"); A("s_mov_b32 s29, s11")
    A("s_add_u32 s20, s6, s18"); A("s_addc_u32 s21, s7, 0")
    def koff(j): return 1024*j if fake=="lin" else (j%2)*2048+(j//2)*128 if fake=="seg128" else 64*j
    def loadK(j): A(f"buffer_load_dwordx4 {vr(KB+4*j,4)}, v{vKA}, {sK}, {sOFF} offen offset:{koff(j)} {kpol}")
    def loadV(e): A(f"buffer_load_dwordx4 {vr(VB+4*e,4)}, v{vVA}, {sV}, {sOFF} offen offset:{1024*e} {pol}")
    if omlds: A(f"buffer_load_dwordx4 {vr(T,4)}, v{U+3}, {sX}, s39 offen")
    else:
        for j in range(4): A(f"buffer_load_dwordx4 {vr(OM+4*j,4)}, v{U+3}, {sX}, 0 offen offset:{64*j}")
    if trace: A("s_memrealtime s[98:99]")
    for j in range(4): loadK(j)
    A("s_add_u32 s24, s8, s18"); A("s_addc_u32 s25, s9, 0")
    if trace: A("s_memrealtime s[100:101]")
    for e in range(4): loadV(e)
    ev(8)
    A("s_mov_b32 s44, s4"); A("s_mov_b32 s45, s5"); A("s_mov_b32 s46, 32768"); A("s_mov_b32 s47, 0x00020000")
    A(f"s_lshl_b32 s39, {sH}, 8")
    A(f"s_mul_i32 s18, {sH}, {cst}"); A(f"s_add_u32 s18, s18, {CTR}"); A("s_add_u32 s68, s16, s18"); A("s_addc_u32 s69, s17, 0")
    A(f"s_lshr_b32 s18, {sH}, 5"); A("s_lshl_b32 s18, s18, 2"); A("s_add_u32 s70, s14, s18"); A("s_addc_u32 s71, s15, 0")
    A(f"s_and_b32 s18, {sH}, 31"); A(f"s_lshl_b32 {sFB}, 1, s18")
    A(f"s_mov_b32 {sHI}, 0xffff0000"); A(f"s_mov_b32 {sL2E}, {LOG2E:#x}"); A(f"s_mov_b32 {sEPS}, {EPSBF:#x}")
    A(f"s_mov_b32 {sPL}, 0x05040100"); A(f"s_mov_b32 {sPHI}, 0x07060302")
    A(f"s_mov_b32 s40, {SCALE:#x}"); A(f"s_mov_b32 s41, {SCALE:#x}")
    A(f"v_mov_b32 v{CN}, 0xbf00bf00"); A(f"v_mov_b32 v{CN+1}, 0xbf00bf00")
    A(f"v_mov_b32 v{ON}, 0x3f803f80"); A(f"v_mov_b32 v{ON+1}, 0x3f803f80")
    A(f"v_and_b32 v{U}, 15, v0"); A(f"v_lshlrev_b32 v{U+1}, 2, v{U+2}"); A(f"v_sub_u32 v{U}, v{U}, v{U+1}")
    A(f"v_mov_b32 v{U+1}, 0xffff"); A(f"v_mov_b32 v{U+2}, {sHI}")
    A(f"v_mov_b32 v{vMA}, 0"); A(f"v_mov_b32 v{vMB}, 0")
    for r,(dst,src) in enumerate([(vMA,U+1),(vMA,U+2),(vMB,U+1),(vMB,U+2)]):
        A(f"v_cmp_eq_u32 vcc, {r}, v{U}"); A("s_nop 1"); A(f"v_cndmask_b32 v{dst}, v{dst}, v{src}, vcc")
    for i in range(32): A(f"v_mov_b32 v{AC+i}, 0")
    for i in range(4): A(f"v_mov_b32 v{Z+i}, 0")
    if part=="x4": A(f"v_mov_b32 v{vPA}, v{vVA}")
    elif part=="x3": A(f"v_mul_u32_u24 v{vPA}, 12, v{vL}")
    else: A(f"v_lshlrev_b32 v{vPA}, 3, v{vL}")
    if omlds:
        A(f"v_lshlrev_b32 v{U}, 4, v0")
    A(f"v_mov_b32 v0, 0x3e800000")
    if stamp: A("s_memrealtime s[60:61]")
    if omlds:
        A("s_waitcnt vmcnt(8)")
        A(f"ds_write_b128 v{U}, {vr(T,4)}")
        A("s_waitcnt lgkmcnt(0)"); A("s_barrier")
        for j in range(4): A(f"ds_read_b128 {vr(OM+4*j,4)}, v{vVA} offset:{1024*j}")
        A("s_waitcnt lgkmcnt(0)")
    if stag:
        A(f"s_mov_b32 s18, {sW}")
        A("L_stag:"); A("s_cmp_eq_u32 s18, 0"); A("s_cbranch_scc1 L_stagd"); A(f"s_sleep {stag}"); A("s_sub_u32 s18, s18, 1"); A("s_branch L_stag"); A("L_stagd:")
    if stamp: A("s_memrealtime s[62:63]")
    def scale4(src, dst, mid=None):
        for q in range(4):
            A(f"v_lshlrev_b32 v{U+2*q}, 16, v{src+q}"); A(f"v_and_b32 v{U+2*q+1}, {sHI}, v{src+q}")
        if mid: mid()
        for q in range(4): A(f"v_pk_mul_f32 {vr(U+2*q,2)}, {vr(U+2*q,2)}, {sSC}")
        for q in range(4): A(f"v_cvt_pk_bf16_f32 v{dst+q}, v{U+2*q}, v{U+2*q+1}")
    def rnd4(R):
        A(f"v_cvt_pk_bf16_f32 v{U}, v{R}, v{R+1}"); A(f"v_cvt_pk_bf16_f32 v{U+1}, v{R+2}, v{R+3}")
        A(f"v_lshlrev_b32 v{R}, 16, v{U}"); A(f"v_and_b32 v{R+1}, {sHI}, v{U}")
        A(f"v_lshlrev_b32 v{R+2}, 16, v{U+1}"); A(f"v_and_b32 v{R+3}, {sHI}, v{U+1}")
    def phi_tail(R):
        rnd4(R)
        for r in range(4): A(f"v_mul_f32 v{R+r}, {sL2E}, v{R+r}")
        for r in range(4): A(f"v_exp_f32 v{R+r}, v{R+r}")
        A("s_nop 0")
        rnd4(R)
        for r in range(4): A(f"v_fmaak_f32 v{R+r}, v{R+r}, v0, {EPSBF:#x}")
    def claim(tag):
        A(f"s_cmp_lg_u32 {sR}, 0"); A(f"s_cbranch_scc1 L_nc{tag}")
        if not peel: A(f"s_cmp_ge_u32 {sT}, {NTH}"); A(f"s_cbranch_scc1 L_nc{tag}")
        A(f"s_mov_b32 {sTK}, 1"); A(f"s_atomic_add {sTK}, {sCT}, 0 glc")
        A(f"L_nc{tag}:")
    def tile(last):
        if early==1 and not last and NL: claim("a")
        for j in range(4):
            A(f"s_waitcnt vmcnt({7-j if (last or kpos) else 7})")
            if early==3 and j==0 and not last and NL: claim("a")
            t=T+4*(j%2)
            scale4(KB+4*j, t, None if (last or kpos) else (lambda: loadK(j)))
            A("s_nop 1")
            c = "0" if j==0 else vr(G,4)
            A(f"v_mfma_f32_16x16x32_bf16 {vr(G,4)}, {vr(t,4)}, {vr(t,4)}, {c}")
            c = "0" if j==0 else vr(P,4)
            A(f"v_mfma_f32_16x16x32_bf16 {vr(P,4)}, {vr(t,4)}, {vr(OM+4*j,4)}, {c}")
        if kpos==1 and not last:
            for j in range(4): loadK(j)
        if early==2 and not last and NL: claim("a"); A("s_nop 4")
        else: A("s_nop 6")
        A(f"v_cvt_pk_bf16_f32 v{PH}, v{G}, v{G+1}"); A(f"v_cvt_pk_bf16_f32 v{PH+1}, v{G+2}, v{G+3}")
        A(f"v_and_b32 v{PH}, v{PH}, v{vMA}"); A(f"v_and_b32 v{PH+1}, v{PH+1}, v{vMB}")
        rnd4(P)
        A("s_nop 1")
        A(f"v_mfma_f32_16x16x16_bf16 {vr(P,4)}, {vr(PH,2)}, {vr(CN,2)}, {vr(P,4)}")
        A("s_nop 7")
        phi_tail(P)
        A(f"v_cvt_pk_bf16_f32 v{PH}, v{P}, v{P+1}"); A(f"v_cvt_pk_bf16_f32 v{PH+1}, v{P+2}, v{P+3}")
        if kpos==2 and not last:
            for j in range(4): loadK(j)
        A(f"s_waitcnt vmcnt({0 if (last or kpos>=3) else 4})")
        if kpos==3 and not last:
            for j in range(4): loadK(j)
        V=VB
        def perm(jj):
            bt=BT+2*(jj%2); q=jj>>1; sel=sPHI if jj&1 else sPL
            A(f"v_perm_b32 v{bt}, v{V+4+q}, v{V+q}, {sel}")
            A(f"v_perm_b32 v{bt+1}, v{V+12+q}, v{V+8+q}, {sel}")
        perm(0)
        A(f"v_mfma_f32_16x16x16_bf16 {vr(Z,4)}, {vr(PH,2)}, {vr(ON,2)}, {vr(Z,4)}")
        for jj in range(8):
            if jj<7: perm(jj+1)
            elif not last:
                if kpos==4:
                    for j in range(4): loadK(j)
                for e in range(4): loadV(e)
            else: A("s_nop 0")
            bt=BT+2*(jj%2)
            A(f"v_mfma_f32_16x16x16_bf16 {vr(AC+4*jj,4)}, {vr(PH,2)}, {vr(bt,2)}, {vr(AC+4*jj,4)}")
    if trace:
        A(f"s_mov_b32 {sN}, 0"); A(f"v_mov_b32 v{TR}, 0"); A("s_waitcnt lgkmcnt(0)"); A(f"v_writelane_b32 v{TR}, s48, 63")
    A(f"s_add_u32 {sT}, {sM}, {MEM}"); A(f"s_mov_b32 {sR}, {ST-2}"); A(f"s_mov_b32 {sS}, {MEM}")
    A(".p2align 3")
    A("L_loop:")
    if trace: A("s_memrealtime s[76:77]")
    A(f"s_lshl_b32 {sOFF}, {sT}, 12")
    tile(False)
    if trace:
        A("s_waitcnt lgkmcnt(0)"); A(f"s_lshr_b32 s18, {sN}, 1"); A("s_min_u32 s18, s18, 43"); A("s_mov_b32 m0, s18"); A("s_nop 0"); A(f"v_writelane_b32 v{TR}, s76, m0"); A(f"s_add_u32 {sN}, {sN}, 1")
    A(f"s_add_u32 {sT}, {sT}, {sS}")
    A(f"s_sub_u32 {sR}, {sR}, 1")
    A("s_cbranch_scc1 L_next")
    J0=ST-4
    A(f"s_cmp_eq_u32 {sR}, {J0}"); A("s_cbranch_scc1 L_job0")
    A(f"s_cmp_gt_u32 {sR}, 9"); A("s_cbranch_scc1 L_loop")
    A(f"s_cmp_lt_u32 {sR}, 8"); A("s_cbranch_scc1 L_loop")
    A(f"s_cmp_eq_u32 {sR}, 8"); A("s_cbranch_scc1 L_job2")
    for j in range(4): A(f"buffer_load_dwordx4 {vr(QB+4*j,4)}, v{vQA}, s[44:47], s39 offen offset:{64*j}")
    A("s_branch L_loop")
    A("L_job0:")
    A(f"s_cmp_lg_u32 {sM}, 0"); A("s_cbranch_scc1 L_loop")
    A("s_mov_b64 s[74:75], 0")
    A(f"s_atomic_swap_x2 s[74:75], {sCT}, 0 glc")
    A("s_waitcnt lgkmcnt(0)")
    A(f"s_atomic_or {sFB}, {sFA}, 0")
    A("s_branch L_loop")
    A("L_job2:")
    A(f"s_load_dword {sFL}, {sFA}, 0")
    for j in range(4):
        scale4(QB+4*j, T+4*(j%2))
        A("s_nop 1")
        c = "0" if j==0 else vr(PQ,4)
        A(f"v_mfma_f32_16x16x32_bf16 {vr(PQ,4)}, {vr(OM+4*j,4)}, {vr(T+4*(j%2),4)}, {c}")
        c = "0" if j==0 else vr(G,4)
        A(f"v_mfma_f32_16x16x32_bf16 {vr(G,4)}, {vr(T+4*(j%2),4)}, {vr(T+4*(j%2),4)}, {c}")
    A("s_nop 7")
    rnd4(PQ); rnd4(G)
    for r in range(4): A(f"v_fma_f32 v{PQ+r}, v{G+r}, -0.5, v{PQ+r}")
    phi_tail(PQ); rnd4(PQ)
    A("s_mov_b32 s28, s16"); A("s_mov_b32 s29, s17"); A(f"s_mov_b32 s30, {1024*PB}")
    A("s_mov_b32 s44, s12"); A("s_mov_b32 s45, s13")
    A("s_waitcnt lgkmcnt(0)")
    A(f"s_and_b32 {sFL}, {sFL}, {sFB}"); A("s_cbranch_scc1 L_loop")
    if spincap: A(f"s_mov_b32 s73, {spincap}")
    A("L_spin:")
    A("s_sleep 8")
    A(f"s_mov_b32 {sFL}, 0"); A(f"s_atomic_or {sFL}, {sFA}, 0 glc"); A("s_waitcnt lgkmcnt(0)")
    if spincap:
        A("s_sub_u32 s73, s73, 1"); A("s_cbranch_scc1 L_end")
    A(f"s_and_b32 {sFL}, {sFL}, {sFB}"); A("s_cbranch_scc0 L_spin")
    A("s_branch L_loop")
    A("L_next:")
    if not peel:
        A(f"s_cmp_gt_u32 {sT}, {NTH}"); A("s_cbranch_scc1 L_done")
    if NL:
        if not early: A(f"s_mov_b32 {sTK}, 1"); A(f"s_atomic_add {sTK}, {sCT}, 0 glc")
        A(f"s_mov_b32 {sS}, 1")
        A("s_waitcnt lgkmcnt(0)")
        A(f"s_cmp_ge_u32 {sTK}, {MEM*NL}"); A("s_cbranch_scc1 L_last")
        A(f"s_and_b32 s18, {sTK}, 0x18")
        A(f"s_lshr_b32 {sR}, {SZT:#x}, s18"); A(f"s_and_b32 {sR}, {sR}, 0xff")
        A(f"s_lshr_b32 {sT}, {BST:#x}, s18"); A(f"s_and_b32 {sT}, {sT}, 0xff")
        A(f"s_and_b32 s18, {sTK}, 7"); A(f"s_mul_i32 s18, s18, {sR}")
        A(f"s_add_u32 {sT}, {sT}, s18"); A(f"s_add_u32 {sT}, {sT}, {MEM*ST}")
        A(f"s_sub_u32 {sR}, {sR}, 1")
        A("s_branch L_loop")
    A("L_last:"); ev(0); ev(1)
    if peel:
        tile(True)
        if trace: A(f"s_add_u32 {sN}, {sN}, 1")
    else:
        A(f"s_mov_b32 {sT}, {NTH}"); A(f"s_mov_b32 {sR}, 0"); A(f"s_mov_b32 {sS}, 1"); A("s_branch L_loop")
        A("L_done:")
    if stamp: A("s_memrealtime s[50:51]")
    A(f"s_mul_i32 s39, {sH}, {8*PB}"); A(f"s_mul_i32 s18, {sM}, {PB}"); A("s_add_u32 s18, s18, s39")
    A("s_nop 3")
    N=T
    A(f"v_mul_f32 v{U}, v{PQ}, v{Z}")
    for jj in range(8):
        A(f"v_mul_f32 v{N+jj}, v{PQ}, v{AC+4*jj}")
    for r in range(1,4):
        A(f"v_fmac_f32 v{U}, v{PQ+r}, v{Z+r}")
        for jj in range(8): A(f"v_fmac_f32 v{N+jj}, v{PQ+r}, v{AC+4*jj+r}")
    A(f"v_mov_b32 v{U+1}, v{U}")
    A("s_nop 0")
    for jj in range(4): A(f"v_permlane32_swap_b32 v{N+jj}, v{N+jj+4}")
    A(f"v_permlane32_swap_b32 v{U}, v{U+1}")
    A("s_nop 1")
    A(f"v_add_f32 v{U}, v{U}, v{U+1}")
    for jj in range(4): A(f"v_add_f32 v{N+jj}, v{N+jj}, v{N+jj+4}")
    A(f"v_mov_b32 v{U+1}, v{U}")
    A("s_nop 0")
    for jj in range(2): A(f"v_permlane16_swap_b32 v{N+jj}, v{N+jj+2}")
    A(f"v_permlane16_swap_b32 v{U}, v{U+1}")
    A("s_nop 1")
    for jj in range(2): A(f"v_add_f32 v{N+jj}, v{N+jj}, v{N+jj+2}")
    A(f"v_add_f32 v{N+2}, v{U}, v{U+1}")
    if part=="x2":
        A(f"v_lshrrev_b32 v{U}, v{vL}, v{N+2}")
        A(f"v_bfi_b32 v{N}, 1, v{U}, v{N}")
    ev(2)
    nd={"x4":4,"x3":3,"x2":2}[part]
    A(f"buffer_store_dword{part} {vr(N,nd)}, v{vPA}, {sX}, s18 offen sc1")
    A(f"s_mov_b32 {sTK}, 1")
    A("s_waitcnt vmcnt(0)")
    ev(3)
    A(f"s_atomic_add {sTK}, {sCT}, 4 glc")
    A(f"s_add_u32 s18, s39, {4*PB}")
    A("s_waitcnt lgkmcnt(0)")
    ev(4); ev(5); ev(6)
    A(f"s_cmp_lg_u32 {sTK}, {MEM-1}"); A("s_cbranch_scc1 L_fin")
    for s in range(8):
        A(f"buffer_load_dword{part} {vr(AC+4*s,nd)}, v{vPA}, {sX}, {'s39' if s<4 else 's18'} offen offset:{(s%4)*PB} sc1")
    A(f"v_and_b32 v{U+6}, 15, v{vL}"); A(f"v_lshrrev_b32 v{U+7}, 4, v{vL}")
    A(f"v_lshlrev_b32 v{U+6}, 4, v{U+6}"); A(f"v_lshl_add_u32 v{U+6}, v{U+7}, 2, v{U+6}")
    A(f"s_lshl_b32 s18, {sH}, 8")
    if part=="x2":
        for s in range(8):
            A(f"s_waitcnt vmcnt({7-s})")
            A(f"v_and_b32 v{U}, 1, v{AC+4*s}")
            A(f"v_cmp_ne_u32 vcc, 0, v{U}")
            if s==0: A(f"v_mov_b32 v{N}, v{AC}"); A(f"v_mov_b32 v{N+1}, v{AC+1}"); A(f"v_mov_b32 v{N+2}, vcc_lo")
            else: A(f"v_add_f32 v{N}, v{N}, v{AC+4*s}"); A(f"v_add_f32 v{N+1}, v{N+1}, v{AC+4*s+1}"); A(f"v_add_f32 v{N+2}, vcc_lo, v{N+2}")
    else:
        A("s_waitcnt vmcnt(6)")
        for i in range(3): A(f"v_add_f32 v{N+i}, v{AC+i}, v{AC+4+i}")
        for s in range(2,8):
            A(f"s_waitcnt vmcnt({7-s})")
            for i in range(3): A(f"v_add_f32 v{N+i}, v{N+i}, v{AC+4*s+i}")
    ev(5)
    rnd4(N)
    A(f"v_add_f32 v{N+2}, {sEPS}, v{N+2}")
    A(f"v_cvt_pk_bf16_f32 v{N+2}, v{N+2}, v{N+2}"); A(f"v_lshlrev_b32 v{N+2}, 16, v{N+2}")
    D=N+2
    for i in range(2):
        n=N+i; a,b2,c,d2,e=U,U+1,U+2,U+3,U+4
        A(f"v_div_scale_f32 v{a}, s[74:75], v{D}, v{D}, v{n}")
        A(f"v_div_scale_f32 v{b2}, vcc, v{n}, v{D}, v{n}")
        A(f"v_rcp_f32 v{c}, v{a}")
        A("s_nop 0")
        A(f"v_fma_f32 v{d2}, -v{a}, v{c}, 1.0")
        A(f"v_fma_f32 v{c}, v{d2}, v{c}, v{c}")
        A(f"v_mul_f32 v{d2}, v{b2}, v{c}")
        A(f"v_fma_f32 v{e}, -v{a}, v{d2}, v{b2}")
        A(f"v_fma_f32 v{d2}, v{e}, v{c}, v{d2}")
        A(f"v_fma_f32 v{a}, -v{a}, v{d2}, v{b2}")
        A(f"v_div_fmas_f32 v{a}, v{a}, v{c}, v{d2}")
        A(f"v_div_fixup_f32 v{n}, v{a}, v{D}, v{n}")
    A(f"v_cvt_pk_bf16_f32 v{N}, v{N}, v{N+1}")
    ev(6)
    A(f"buffer_store_dword v{N}, v{U+6}, s[44:47], s18 offen {opol}")
    A("L_fin:")
    if stamp:
        A("s_waitcnt vmcnt(0)")
        A("s_memrealtime s[52:53]"); A("s_memtime s[58:59]")
        A("s_getreg_b32 s54, hwreg(HW_REG_XCC_ID)")
        A("s_getreg_b32 s55, hwreg(HW_REG_HW_ID)")
        A("s_waitcnt lgkmcnt(0)")
        A("s_add_u32 s28, s16, 0x20000000"); A("s_addc_u32 s29, s17, 0"); A("s_mov_b32 s30, 0x1000000")
        A(f"s_mul_i32 s18, s2, {W}"); A(f"s_add_u32 s18, s18, {sW}"); A("s_lshl_b32 s18, s18, 6")
        for i in range(16): A(f"v_mov_b32 v{AC+i}, s{48+i}")
        A(f"v_mov_b32 v{U}, 0")
        for i in range(4): A(f"buffer_store_dwordx4 {vr(AC+4*i,4)}, v{U}, {sX}, s18 offen offset:{16*i}")
        if trace:
            A(f"v_writelane_b32 v{TR}, s50, 62"); A(f"v_writelane_b32 v{TR}, s54, 61"); A(f"v_writelane_b32 v{TR}, s55, 60"); A(f"v_writelane_b32 v{TR}, {sN}, 59")
            for i in range(9): A(f"v_writelane_b32 v{TR}, s{80+2*i}, {48+i}")
            A(f"v_writelane_b32 v{TR}, s98, 44"); A(f"v_writelane_b32 v{TR}, s100, 45"); A(f"v_writelane_b32 v{TR}, s60, 46"); A(f"v_writelane_b32 v{TR}, s62, 47")
            A(f"v_writelane_b32 v{TR}, s52, 57"); A(f"v_writelane_b32 v{TR}, {sTK}, 58")
            A("s_lshl_b32 s18, s18, 2"); A("s_add_u32 s18, s18, 0x100000"); A(f"v_lshlrev_b32 v{U}, 2, v{vL}")
            A(f"buffer_store_dword v{TR}, v{U}, {sX}, s18 offen")
    A("L_end:"); A("s_endpgm")
    acc=min(256,(nv+3)//4*4)
    A('.section .rodata,"a"'); A(".p2align 6"); A(f".amdhsa_kernel {KN}")
    A(f"  .amdhsa_next_free_vgpr {nv}"); A(f"  .amdhsa_next_free_sgpr {102 if trace else 80}"); A(f"  .amdhsa_accum_offset {acc}")
    A("  .amdhsa_group_segment_fixed_size 0"); A("  .amdhsa_kernarg_size 56"); A("  .amdhsa_user_sgpr_count 2"); A("  .amdhsa_user_sgpr_kernarg_segment_ptr 1"); A("  .amdhsa_system_sgpr_workgroup_id_x 1")
    A("  .amdhsa_float_denorm_mode_32 3")
    A(".end_amdhsa_kernel")
    return "\n".join(o)+"\n"
if __name__=="__main__":
    from build import build
    import os
    os.makedirs("k",exist_ok=True)
    names=[]
    for spec in sys.argv[1:]:
        kw={}
        for p in spec.split(","):
            k,v=p.split("=")
            kw[k]= v if k=="LV" else int(v) if v.isdigit() else v.replace("+"," ").replace("none","")
        name="k/g3_"+spec.replace("=","").replace(",","_").replace("+","")
        open(name+".s","w").write(gen(**kw))
        build(name+".s")
        names.append(name)
    print(" ".join(names))
```

```python
import sys, struct
KN="standalone__linear_kernel_rfa__decode_kernel"
def f2u(x): return struct.unpack("<I",struct.pack("<f",x))[0]
SCALE=0x3e9837f0
LOG2E=f2u(1.4426950408889634)
EPSBF=0x35860000
HDR="""; RFA (FAVOR+) linear-attention decode, B=4 H=32 Sk=8192 D=128 M=16, bf16.
"""
def gen(LV="211", pol="nt", stamp=0, trace=0, spincap=1000000, opol="", kpos=2, cst=256,
        pat="abch.kde.ljigfm.0321465.4.2.36.0", mrot=0, wgc=1, hand=1, pro="okv", psleep=0, ldsonly=0, baronly=0, barpos=0, rt=0, fin=0, early=0, dbg=0, RK=None, nb=0, fake=0, pad=0, poll=1):
    W=4; NWG=256; MEM=8
    LV=[int(c,16) for c in str(LV)] if str(LV)!="0" else []
    assert all(z<7 for z in LV)
    ST=64-sum(LV)-fin
    if RK is not None:
        RK=[int(c,16) for c in str(RK)]; assert len(RK)==8 and (sum(RK)+nb)%8==0 and not wgc and not early
        ST=64-(sum(RK)+nb)//8-fin; LV=[]
    NL=len(LV)
    f=pat.split(".")
    ib=[8+ord(c)-97 for c in f[0]]; mb=[8+ord(c)-97 for c in f[1]]; tb=[8+ord(c)-97 for c in f[2]]
    hb=[int(c) for c in f[3]]; hx,hxs,hr,hrs=map(int,f[4:8])
    assert sorted(ib+mb+tb)==list(range(8,21)) and sorted(hb)==list(range(7))
    def scat(x,bits): return sum(((x>>k)&1)<<p for k,p in enumerate(bits))
    tstart=[]; acc_=ST
    for z in LV: tstart.append(acc_); acc_+=z
    CTR=0x200000
    o=[]; A=o.append
    def C(t): A("; "+t)
    A(HDR.rstrip())
    A(f"; @launch grid=({NWG},1,1) block=({W*64},1,1) lds={256 if (wgc or ldsonly) else 0}")
    A('.amdgcn_target "amdgcn-amd-amdhsa--gfx950"')
    A(".text"); A(f".globl {KN}"); A(".p2align 8"); A(f".type {KN},@function"); A(f"{KN}:")
    vKA,vVA=1,2
    vMA,vMB=3,4
    vL=5
    CN=6; ON=8; PH=10; BT=12
    P=16; G=20; PQ=24; Z=28
    T=32; U=40; OM=48; AC=64
    KB=96; VB=112; QB=128
    vQA=144; vPA=145; vV0=146; vTAB=150; vCA=151; OLD=152; KB2=168; TR=KB2+32*fin
    nv=TR+1 if trace else (TR if fin else 166)
    sK,sV,sX,sQ="s[20:23]","s[24:27]","s[28:31]","s[44:47]"
    sOFF="s32"; sT="s33"; sHI="s34"; sL2E="s35"; sEPS="s36"; sPL="s37"; sPHI="s38"; sW="s3"
    sSC="s[40:41]"
    sR="s42"; sS="s43"; sTK="s64"; sFL="s65"; sH="s19"; sM="s66"; sCT="s[68:69]"; sFA="s[70:71]"; sFB="s67"; sN="s72"
    sLH="s78"; sHX="s79"; sFM="s39"; sSL="s73"; sQO="s74"; sCAP="s75"; sAR="s[76:77]"
    def vr(a,n): return f"v[{a}:{a+n-1}]"
    def ev(i):
        if trace: A(f"s_memrealtime s[{80+2*i}:{81+2*i}]")
    A(f"s_cmp_ge_u32 s2, {NWG}"); A("s_cbranch_scc1 L_end")
    A("s_load_dwordx8 s[4:11], s[0:1], 0")
    A("s_load_dwordx4 s[12:15], s[0:1], 32")
    A("s_load_dwordx2 s[16:17], s[0:1], 48")
    if stamp: A("s_memrealtime s[48:49]"); A("s_memtime s[56:57]")
    if rt:
        assert not trace and not stamp
        A("s_waitcnt lgkmcnt(0)")
        A("s_load_dwordx16 s[80:95], s[10:11], 4096")
        A("s_load_dwordx16 s[48:63], s[10:11], 4160")
        A("s_waitcnt lgkmcnt(0)")
        ib=["s80","s81","s82","s83"]; mb=["s84","s85","s86"]; tb=[f"s{87+k}" for k in range(6)]; hb=[f"s{52+k}" for k in range(7)]
        hx,hxs,hr,hrs,mrot="s94","s48","s95","s50","s93"
    A(f"v_lshrrev_b32 v{vKA}, 6, v0"); A(f"v_and_b32 v{vL}, 63, v0")
    A(f"v_readfirstlane_b32 {sW}, v{vKA}")
    if wgc:
        C("clear the workgroup's ticket mailbox")
        A(f"v_lshlrev_b32 v{U}, 2, v{vL}"); A(f"v_mov_b32 v{vCA}, 0"); A(f"ds_write_b32 v{U}, v{vCA}")
    C("per-lane byte offsets inside a 16-key tile")
    A(f"v_bfe_u32 v{U+2}, v0, 4, 2")
    A(f"v_lshlrev_b32 v{vKA}, 4, v{U+2}")
    def vscat(dst, src, pairs):
        k=0
        while k<len(pairs):
            lb,pos=pairs[k]; n=1
            while not rt and k+n<len(pairs) and pairs[k+n]==(lb+n,pos+n): n+=1
            A(f"v_bfe_u32 v{U+4}, v{src}, {lb}, {n}"); A(f"v_lshl_add_u32 v{dst}, v{U+4}, {pos}, v{dst}")
            k+=n
    vscat(vKA,0,[(2,ib[0]),(3,ib[1]),(0,ib[2]),(1,ib[3])])
    A(f"v_lshlrev_b32 v{vVA}, 4, v{vL}")
    if (ib[0],ib[1])!=(8,9):
        A(f"v_and_b32 v{vVA}, 15, v0"); A(f"v_lshlrev_b32 v{vVA}, 4, v{vVA}"); vscat(vVA,0,[(4,ib[0]),(5,ib[1])])
    vreg={}; voff={}
    if rt:
        A(f"v_lshl_add_u32 v{vV0+1}, 1, {ib[2]}, v{vVA}"); A(f"v_lshl_add_u32 v{vV0+2}, 1, {ib[3]}, v{vVA}"); A(f"v_lshl_add_u32 v{vV0+3}, 1, {ib[3]}, v{vV0+1}")
        vreg={0:vVA,1:vV0+1,2:vV0+2,3:vV0+3}; voff={0:0,1:0,2:0,3:0}
    for e in range(4):
        if rt: break
        x=scat(e,ib[2:]); lo=x&0xfff; hi=x-lo
        if hi==0: vreg[e]=vVA
        else:
            prev=[g for g in range(e) if (scat(g,ib[2:])&~0xfff)==hi]
            if prev: vreg[e]=vreg[prev[0]]
            else: vreg[e]=vV0+e; A(f"v_add_u32 v{vV0+e}, {hi:#x}, v{vVA}")
        voff[e]=lo
    A(f"v_and_b32 v{U+3}, 15, v0"); A(f"v_lshlrev_b32 v{vQA}, 4, v{U+2}"); A(f"v_lshl_add_u32 v{U+3}, v{U+3}, 8, v{vQA}")
    C("logical head = 4*group + wave; physical head, share (member) and trip table")
    A(f"s_lshr_b32 {sLH}, s2, 3"); A(f"s_lshl2_add_u32 {sLH}, {sLH}, {sW}")
    def sperm(dst, src, pos):
        k=0; first=True
        while k<len(pos):
            n=1
            while not rt and k+n<len(pos) and pos[k+n]==pos[k]+n: n+=1
            t_=dst if first else "s18"
            A(f"s_bfe_u32 {t_}, {src}, {k|(n<<16):#x}")
            if pos[k]: A(f"s_lshl_b32 {t_}, {t_}, {pos[k]}")
            if not first: A(f"s_or_b32 {dst}, {dst}, s18")
            first=False; k+=n
    sperm(sH,sLH,hb)
    A(f"s_lshr_b32 {sHX}, {sLH}, {hxs}"); A(f"s_mul_i32 {sHX}, {sHX}, {hx}")
    if mrot: A(f"s_add_u32 {sHX}, {sHX}, {mrot}")
    A(f"s_add_u32 {sTK}, {sHX}, s2")
    sperm(sT,sTK,mb)
    if hr:
        A(f"s_lshr_b32 s18, {sLH}, {hrs}"); A(f"s_mul_i32 s18, s18, {hr}"); A(f"v_xor_b32 v{U+1}, s18, v0")
    else: A(f"v_mov_b32 v{U+1}, v0")
    A(f"v_mov_b32 v{vTAB}, 0")
    vscat(vTAB,U+1,[(k,tb[k]) for k in range(6)])
    A(f"s_lshl_b32 s18, {sH}, 21")
    A(f"v_readlane_b32 {sOFF}, v{vTAB}, 0")
    A("s_mov_b32 s22, 0x200000"); A("s_mov_b32 s23, 0x00020000"); A("s_mov_b32 s26, 0x200000"); A("s_mov_b32 s27, 0x00020000")
    A("s_mov_b32 s30, 4096"); A("s_mov_b32 s31, 0x00020000")
    A(f"s_or_b32 {sOFF}, {sOFF}, {sT}")
    if trace==3: A("s_memrealtime s[60:61]")
    A("s_waitcnt lgkmcnt(0)"); ev(7)
    if (wgc and barpos==0) or baronly: A("s_barrier")
    A("s_mov_b32 s28, s10"); A("s_mov_b32 s29, s11")
    A("s_add_u32 s20, s6, s18"); A("s_addc_u32 s21, s7, 0")
    A("s_add_u32 s24, s8, s18"); A("s_addc_u32 s25, s9, 0")
    def loadK(j,KB=KB):
        if fake: A(f"buffer_load_dwordx4 {vr(KB+4*j,4)}, v{vreg[j]}, {sK}, {sOFF} offen offset:{voff[j]} {pol}")
        else: A(f"buffer_load_dwordx4 {vr(KB+4*j,4)}, v{vKA}, {sK}, {sOFF} offen offset:{64*j} {pol}")
    def loadV(e,VB=VB): A(f"buffer_load_dwordx4 {vr(VB+4*e,4)}, v{vreg[e]}, {sV}, {sOFF} offen offset:{voff[e]} {pol}")
    for n,c in enumerate(pro):
        for j in range(4):
            if c=='o': A(f"buffer_load_dwordx4 {vr(OM+4*j,4)}, v{U+3}, {sX}, 0 offen offset:{64*j}")
            if c=='k': loadK(j)
            if c=='v': loadV(j)
        if trace and n<2: A(f"s_memrealtime s[{98+2*n}:{99+2*n}]")
    ev(8)
    A(f"s_and_b32 {sM}, s2, 7")
    A("s_mov_b32 s28, s16"); A("s_mov_b32 s29, s17"); A(f"s_mov_b32 s30, {128*4096}")
    A("s_mov_b32 s44, s4"); A("s_mov_b32 s45, s5"); A("s_mov_b32 s46, 32768"); A("s_mov_b32 s47, 0x00020000")
    A(f"s_lshl_b32 {sQO}, {sH}, 8")
    A(f"s_lshl_b32 {sSL}, {sLH}, 12")
    A(f"s_and_b32 s18, {sLH}, {0x7c if wgc else 0x7f}"); A(f"s_mul_i32 s18, s18, {cst}"); A(f"s_add_u32 s18, s18, {CTR}"); A("s_add_u32 s68, s16, s18"); A("s_addc_u32 s69, s17, 0")
    if not hand:
        A(f"s_mul_i32 s18, {sLH}, {cst}"); A(f"s_add_u32 s18, s18, {CTR}"); A("s_add_u32 s76, s16, s18"); A("s_addc_u32 s77, s17, 0")
    A(f"s_lshr_b32 s18, {sLH}, 5"); A("s_lshl_b32 s18, s18, 2"); A("s_add_u32 s70, s14, s18"); A("s_addc_u32 s71, s15, 0")
    A(f"s_lshl_b32 {sFB}, 1, {sLH}")
    if wgc: A(f"s_and_b32 s18, {sLH}, 28"); A(f"s_lshl_b32 {sFM}, 1, s18"); A(f"s_or_b32 {sFM}, {sFM}, {sFB}")
    else: A(f"s_mov_b32 {sFM}, {sFB}")
    A(f"s_mov_b32 {sHI}, 0xffff0000"); A(f"s_mov_b32 {sL2E}, {LOG2E:#x}"); A(f"s_mov_b32 {sEPS}, {EPSBF:#x}")
    A(f"s_mov_b32 {sPL}, 0x05040100"); A(f"s_mov_b32 {sPHI}, 0x07060302")
    A(f"s_mov_b32 s40, {SCALE:#x}"); A(f"s_mov_b32 s41, {SCALE:#x}")
    A(f"s_mov_b32 {sCAP}, {spincap}")
    if dbg: A("s_mov_b32 s4, 0")
    if RK is not None: A("s_mov_b32 s4, 0"); A("s_mov_b32 s5, 0"); A("s_mov_b32 s8, 0")
    A(f"v_mov_b32 v{CN}, 0xbf00bf00"); A(f"v_mov_b32 v{CN+1}, 0xbf00bf00")
    A(f"v_mov_b32 v{ON}, 0x3f803f80"); A(f"v_mov_b32 v{ON+1}, 0x3f803f80")
    C("masks that keep the diagonal of the 16x16 Gram tile")
    A(f"v_and_b32 v{U}, 15, v0"); A(f"v_lshlrev_b32 v{U+1}, 2, v{U+2}"); A(f"v_sub_u32 v{U}, v{U}, v{U+1}")
    A(f"v_mov_b32 v{U+1}, 0xffff"); A(f"v_mov_b32 v{U+2}, {sHI}")
    A(f"v_mov_b32 v{vMA}, 0"); A(f"v_mov_b32 v{vMB}, 0")
    for r,(dst,src) in enumerate([(vMA,U+1),(vMA,U+2),(vMB,U+1),(vMB,U+2)]):
        A(f"v_cmp_eq_u32 vcc, {r}, v{U}"); A("s_nop 1"); A(f"v_cndmask_b32 v{dst}, v{dst}, v{src}, vcc")
    for i in range(32): A(f"v_mov_b32 v{AC+i}, 0")
    for i in range(4): A(f"v_mov_b32 v{Z+i}, 0")
    A(f"v_lshlrev_b32 v{vPA}, 3, v{vL}")
    A(f"v_mov_b32 v0, 0x3e800000")
    if stamp and trace!=3: A("s_memrealtime s[60:61]")
    if stamp: A("s_memrealtime s[62:63]")
    if pro[-1]=='o': A("s_waitcnt vmcnt(0)")
    elif pro[1]=='o': A("s_waitcnt vmcnt(4)")
    def scale4(src, dst, mid=None):
        for q in range(4):
            A(f"v_lshlrev_b32 v{U+2*q}, 16, v{src+q}"); A(f"v_and_b32 v{U+2*q+1}, {sHI}, v{src+q}")
        if mid: mid()
        for q in range(4): A(f"v_pk_mul_f32 {vr(U+2*q,2)}, {vr(U+2*q,2)}, {sSC}")
        for q in range(4): A(f"v_cvt_pk_bf16_f32 v{dst+q}, v{U+2*q}, v{U+2*q+1}")
    def rnd4(R):
        A(f"v_cvt_pk_bf16_f32 v{U}, v{R}, v{R+1}"); A(f"v_cvt_pk_bf16_f32 v{U+1}, v{R+2}, v{R+3}")
        A(f"v_lshlrev_b32 v{R}, 16, v{U}"); A(f"v_and_b32 v{R+1}, {sHI}, v{U}")
        A(f"v_lshlrev_b32 v{R+2}, 16, v{U+1}"); A(f"v_and_b32 v{R+3}, {sHI}, v{U+1}")
    def phi_tail(R):
        rnd4(R)
        for r in range(4): A(f"v_mul_f32 v{R+r}, {sL2E}, v{R+r}")
        for r in range(4): A(f"v_exp_f32 v{R+r}, v{R+r}")
        A("s_nop 0")
        rnd4(R)
        for r in range(4): A(f"v_fmaak_f32 v{R+r}, v{R+r}, v0, {EPSBF:#x}")
    def tile(last, KB=KB, VB=VB, extra=0):
        C("ks = bf16(k*scale); G += ks.ks^T; P += ks.omega^T")
        if early==1 and not last and NL:
            A(f"s_cmp_lg_u32 {sR}, 0"); A(f"s_cbranch_scc1 L_nc"); A(f"s_mov_b32 {sTK}, 1"); A(f"s_atomic_add {sTK}, {sCT}, 0 glc"); A("L_nc:")
        for j in range(4):
            A(f"s_waitcnt vmcnt({extra+(7-j if (last or kpos) else 7)})")
            t=T+4*(j%2)
            scale4(KB+4*j, t, None if (last or kpos) else (lambda: loadK(j)))
            A("s_nop 1")
            c = "0" if j==0 else vr(G,4)
            A(f"v_mfma_f32_16x16x32_bf16 {vr(G,4)}, {vr(t,4)}, {vr(t,4)}, {c}")
            c = "0" if j==0 else vr(P,4)
            A(f"v_mfma_f32_16x16x32_bf16 {vr(P,4)}, {vr(t,4)}, {vr(OM+4*j,4)}, {c}")
        if kpos==1 and not last:
            for j in range(4): loadK(j)
            A("s_nop 2")
        else: A("s_nop 6")
        C("x = bf16(P) - 0.5*bf16(diag G); phi = bf16(bf16(exp(bf16(x)))/4 + eps)")
        A(f"v_cvt_pk_bf16_f32 v{PH}, v{G}, v{G+1}"); A(f"v_cvt_pk_bf16_f32 v{PH+1}, v{G+2}, v{G+3}")
        A(f"v_and_b32 v{PH}, v{PH}, v{vMA}"); A(f"v_and_b32 v{PH+1}, v{PH+1}, v{vMB}")
        rnd4(P)
        A("s_nop 1")
        A(f"v_mfma_f32_16x16x16_bf16 {vr(P,4)}, {vr(PH,2)}, {vr(CN,2)}, {vr(P,4)}")
        A("s_nop 7")
        phi_tail(P)
        A(f"v_cvt_pk_bf16_f32 v{PH}, v{P}, v{P+1}"); A(f"v_cvt_pk_bf16_f32 v{PH+1}, v{P+2}, v{P+3}")
        if kpos==2 and not last:
            for j in range(4): loadK(j)
        if early==2 and not last and NL:
            A(f"s_cmp_lg_u32 {sR}, 0"); A(f"s_cbranch_scc1 L_nc"); A(f"s_mov_b32 {sTK}, 1"); A(f"s_atomic_add {sTK}, {sCT}, 0 glc"); A("L_nc:")
        A(f"s_waitcnt vmcnt({extra+(0 if (last or kpos>=3) else 4)})")
        if kpos==3 and not last:
            for j in range(4): loadK(j)
        V=VB
        def perm(jj):
            bt=BT+2*(jj%2); q=jj>>1; sel=sPHI if jj&1 else sPL
            A(f"v_perm_b32 v{bt}, v{V+4+q}, v{V+q}, {sel}")
            A(f"v_perm_b32 v{bt+1}, v{V+12+q}, v{V+8+q}, {sel}")
        C("z += phi^T.1 ; kv += phi^T.V")
        perm(0)
        A(f"v_mfma_f32_16x16x16_bf16 {vr(Z,4)}, {vr(PH,2)}, {vr(ON,2)}, {vr(Z,4)}")
        for jj in range(8):
            if jj<7: perm(jj+1)
            elif not last:
                for i in range(pad): A("s_nop 15")
                if kpos==4:
                    for j in range(4): loadK(j)
                for e in range(4): loadV(e)
            else: A("s_nop 0")
            bt=BT+2*(jj%2)
            A(f"v_mfma_f32_16x16x16_bf16 {vr(AC+4*jj,4)}, {vr(PH,2)}, {vr(bt,2)}, {vr(AC+4*jj,4)}")
    if trace:
        A(f"s_mov_b32 {sN}, 0"); A(f"v_mov_b32 v{TR}, 0"); A("s_waitcnt lgkmcnt(0)"); A(f"v_writelane_b32 v{TR}, s48, 63")
    C(f"{sS} = trip index of the tile loaded in this trip, {sR} = tiles left in the chunk after it, {sT} = share bits")
    A(f"s_mov_b32 {sS}, 1"); A(f"s_mov_b32 {sR}, {ST-2}")
    A(".p2align 3")
    A("L_loop:")
    if trace: A("s_memrealtime s[96:97]")
    A(f"v_readlane_b32 {sOFF}, v{vTAB}, {sS}")
    A(f"s_add_u32 {sS}, {sS}, 1")
    A(f"s_or_b32 {sOFF}, {sOFF}, {sT}")
    tile(False)
    if trace:
        A("s_waitcnt lgkmcnt(0)"); A(f"s_lshr_b32 s18, {sN}, 1"); A("s_min_u32 s18, s18, 35"); A("s_mov_b32 m0, s18"); A("s_nop 0"); A(f"v_writelane_b32 v{TR}, s96, m0"); A(f"s_add_u32 {sN}, {sN}, 1")
    A(f"s_sub_u32 {sR}, {sR}, 1")
    A("s_cbranch_scc1 L_next")
    C("one-off jobs run in the idle window between two static trips")
    J0=ST-4
    A(f"s_sub_u32 s18, {sR}, {J0-1}"); A("s_cmp_lt_u32 s18, 2"); A("s_cbranch_scc1 L_job0")
    A(f"s_sub_u32 s18, {sR}, 8"); A("s_cmp_gt_u32 s18, 1"); A("s_cbranch_scc1 L_loop")
    A(f"s_cmp_eq_u32 s18, 0"); A("s_cbranch_scc1 L_job2")
    C("job1: fetch q")
    for j in range(4): A(f"buffer_load_dwordx4 {vr(QB+4*j,4)}, v{vQA}, {sQ}, {sQO} offen offset:{64*j}")
    A("s_branch L_loop")
    A("L_job0:")
    A(f"s_cmp_eq_u32 s18, 0"); A("s_cbranch_scc1 L_job0b")
    if hand:
        C("job0a: read what the hand-off slots hold now; a word is new once its lowest bit has flipped")
        A(f"s_cmp_eq_u32 {sM}, 0"); A("s_cbranch_scc1 L_job0p")
        A(f"s_lshl_b32 s18, {sM}, 9"); A(f"s_add_u32 {sSL}, {sSL}, s18")
        A(f"buffer_load_dwordx2 {vr(OLD,2)}, v{vPA}, {sX}, {sSL} offen sc1")
        A("s_branch L_loop")
        A("L_job0p:")
        for s in range(1,8): A(f"buffer_load_dwordx2 {vr(OLD+2*s-2,2)}, v{vPA}, {sX}, {sSL} offen offset:{512*s} sc1")
    A("s_branch L_loop")
    A("L_job0b:")
    C("job0b: member 0 clears the ticket counter, then raises its ready bit")
    if hand:
        A(f"s_cmp_eq_u32 {sM}, 0"); A("s_cbranch_scc1 L_job0q")
        A(f"v_not_b32 v{OLD}, v{OLD}"); A(f"v_not_b32 v{OLD+1}, v{OLD+1}"); A(f"v_and_b32 v{OLD}, 1, v{OLD}")
        A("s_branch L_loop")
        A("L_job0q:")
        if wgc: A(f"s_cmp_lg_u32 {sW}, 0"); A("s_cbranch_scc1 L_job0r")
        A(f"s_mov_b32 {sTK}, 0"); A(f"s_atomic_swap {sTK}, {sCT}, 0 glc")
        A("s_waitcnt lgkmcnt(0)")
        A("L_job0r:")
    else:
        A(f"s_cmp_lg_u32 {sM}, 0"); A("s_cbranch_scc1 L_loop")
        A("s_mov_b64 s[64:65], 0")
        A(f"s_atomic_swap_x2 s[64:65], {sAR}, 0 glc")
        A("s_waitcnt lgkmcnt(0)")
    A(f"s_atomic_or {sFB}, {sFA}, 0")
    A("s_branch L_loop")
    A("L_job2:")
    C("job2: phi_q (A=omega, B=qs: rows are m) and the ready check")
    A(f"s_load_dword {sFL}, {sFA}, 0")
    for j in range(4):
        scale4(QB+4*j, T+4*(j%2))
        A("s_nop 1")
        c = "0" if j==0 else vr(PQ,4)
        A(f"v_mfma_f32_16x16x32_bf16 {vr(PQ,4)}, {vr(OM+4*j,4)}, {vr(T+4*(j%2),4)}, {c}")
        c = "0" if j==0 else vr(G,4)
        A(f"v_mfma_f32_16x16x32_bf16 {vr(G,4)}, {vr(T+4*(j%2),4)}, {vr(T+4*(j%2),4)}, {c}")
    A("s_nop 7")
    rnd4(PQ); rnd4(G)
    for r in range(4): A(f"v_fma_f32 v{PQ+r}, v{G+r}, -0.5, v{PQ+r}")
    phi_tail(PQ); rnd4(PQ)
    A("s_mov_b32 s44, s12"); A("s_mov_b32 s45, s13")
    C("output lane offset")
    A(f"v_and_b32 v{vQA}, 15, v{vL}"); A(f"v_lshrrev_b32 v{U}, 4, v{vL}")
    A(f"v_lshlrev_b32 v{vQA}, 4, v{vQA}"); A(f"v_lshl_add_u32 v{vQA}, v{U}, 2, v{vQA}")
    A("s_waitcnt lgkmcnt(0)")
    if wgc and barpos==1: A("s_barrier")
    A("L_chk:")
    A(f"s_and_b32 {sFL}, {sFL}, {sFM}"); A(f"s_cmp_eq_u32 {sFL}, {sFM}"); A("s_cbranch_scc1 L_loop")
    A("s_sleep 8")
    A(f"s_mov_b32 {sFL}, 0"); A(f"s_atomic_or {sFL}, {sFA}, 0 glc"); A("s_waitcnt lgkmcnt(0)")
    A(f"s_sub_u32 {sCAP}, {sCAP}, 1"); A("s_cbranch_scc0 L_chk")
    A("s_branch L_end")
    A("L_next:")
    if RK is not None:
        st=[sum(RK[:t]) for t in range(8)]
        AT=sum(a<<(8*t) for t,a in enumerate(st)); SZ=sum(z<<(4*t) for t,z in enumerate(RK))
        C("s4 = next leftover tile of the drawn run, s5 = tiles left in it, s8 = draws so far")
        A("L_next2:")
        A("s_sub_u32 s5, s5, 1"); A("s_cbranch_scc0 L_run")
        if not nb: A("s_cmp_lg_u32 s8, 0"); A("s_cbranch_scc1 L_last"); A("s_mov_b32 s8, 1")
        A(f"s_mov_b32 {sTK}, 1"); A(f"s_atomic_add {sTK}, {sCT}, 0 glc")
        A(f"s_mov_b32 s6, {AT&0xffffffff:#x}"); A(f"s_mov_b32 s7, {AT>>32:#x}")
        A("s_waitcnt lgkmcnt(0)")
        if nb:
            A(f"s_cmp_ge_u32 {sTK}, {8+nb}"); A("s_cbranch_scc1 L_last")
            A(f"s_add_u32 s4, {sTK}, {sum(RK)-8}"); A("s_mov_b32 s5, 0")
            A(f"s_cmp_ge_u32 {sTK}, 8"); A("s_cbranch_scc1 L_run")
        A(f"s_lshl_b32 s18, {sTK}, 3"); A("s_lshr_b64 s[6:7], s[6:7], s18"); A("s_and_b32 s4, s6, 0xff")
        A(f"s_lshl_b32 s18, {sTK}, 2"); A(f"s_lshr_b32 s5, {SZ:#x}, s18"); A("s_and_b32 s5, s5, 15")
        A("s_branch L_next2")
        A("L_run:")
        A(f"s_add_u32 {sFL}, s4, {sHX}")
        sperm(sT, sFL, mb)
        A(f"s_lshr_b32 {sS}, s4, 3"); A(f"s_add_u32 {sS}, {sS}, {ST}"); A(f"s_mov_b32 {sR}, 0")
        A("s_add_u32 s4, s4, 1")
        A("s_branch L_loop")
    if NL:
        if wgc:
            C("first wave of the workgroup to get here draws the ticket, the others read it from LDS")
            A("s_mov_b64 exec, 1")
            A(f"v_mov_b32 v{U}, 1")
            A(f"ds_max_rtn_u32 v{U}, v{vCA}, v{U}")
            A("L_mail:")
            A("s_waitcnt lgkmcnt(0)")
            A(f"v_readfirstlane_b32 {sTK}, v{U}")
            A(f"s_cmp_eq_u32 {sTK}, 1"); A("s_cbranch_scc0 L_mail2")
            A(f"ds_read_b32 v{U}, v{vCA}")
            A(f"s_sub_u32 {sCAP}, {sCAP}, 1"); A("s_cbranch_scc0 L_mail")
            A("s_branch L_end")
            A("L_mail2:")
            A(f"s_sub_u32 {sTK}, {sTK}, 2"); A("s_cbranch_scc0 L_have")
            A(f"s_mov_b32 {sTK}, 1"); A(f"s_atomic_add {sTK}, {sCT}, 0 glc")
            A("s_waitcnt lgkmcnt(0)")
            A(f"s_min_u32 {sTK}, {sTK}, {MEM*NL}")
            A(f"s_add_u32 s18, {sTK}, 2"); A(f"v_mov_b32 v{U}, s18")
            A(f"ds_write_b32 v{vCA}, v{U}")
            A("L_have:")
            A("s_mov_b64 exec, -1")
            A(f"v_add_u32 v{vCA}, 4, v{vCA}")
        else:
            if not early and dbg not in (2,3): A(f"s_mov_b32 {sTK}, 1"); A(f"s_atomic_add {sTK}, {sCT}, 0 glc")
            A("s_waitcnt lgkmcnt(0)")
            if dbg:
                if dbg==2: A(f"s_mul_i32 {sTK}, {sLH}, 0x9e3779"); A(f"s_lshr_b32 {sTK}, {sTK}, 11"); A(f"s_add_u32 {sTK}, {sTK}, {sM}"); A(f"s_and_b32 {sTK}, {sTK}, 7")
                else: A(f"s_mov_b32 {sTK}, {sM}")
                A(f"s_add_u32 {sTK}, {sTK}, s4"); A("s_add_u32 s4, s4, 8")
        A(f"s_cmp_ge_u32 {sTK}, {MEM*NL}"); A("s_cbranch_scc1 L_last")
        A(f"s_add_u32 {sFL}, {sTK}, {sHX}")
        sperm(sT, sFL, mb)
        if all(z==1 for z in LV):
            A(f"s_lshr_b32 {sS}, {sTK}, 3"); A(f"s_add_u32 {sS}, {sS}, {ST}"); A(f"s_mov_b32 {sR}, 0")
        else:
            A(f"s_mov_b32 {sS}, {tstart[0]}"); A(f"s_mov_b32 {sR}, {LV[0]-1}")
            for L in range(1,NL):
                A(f"s_cmp_ge_u32 {sTK}, {MEM*L}"); A(f"s_cselect_b32 {sS}, {tstart[L]}, {sS}")
                if LV[L]!=LV[L-1]: A(f"s_cselect_b32 {sR}, {LV[L]-1}, {sR}")
        A("s_branch L_loop")
    A("L_last:"); ev(0); ev(1)
    if fin:
        C("the wave's own closing tiles go out at once, beside the tile already in flight")
        A(f"s_add_u32 {sFL}, {sHX}, s2"); sperm(sT, sFL, mb)
        for i in range(fin):
            A(f"v_readlane_b32 {sOFF}, v{vTAB}, {64-fin+i}"); A("s_nop 0"); A(f"s_or_b32 {sOFF}, {sOFF}, {sT}")
            for j in range(4): loadK(j,KB2+32*i)
            for e in range(4): loadV(e,KB2+32*i+16)
        tile(True, extra=8*fin)
        for i in range(fin): tile(True, KB2+32*i, KB2+32*i+16, extra=8*(fin-1-i))
    else: tile(True)
    if trace: A(f"s_add_u32 {sN}, {sN}, {1+fin}")
    if stamp: A("s_memrealtime s[50:51]")
    C("contract with phi_q, then fold the four lane groups")
    A("s_nop 6")
    N=T
    A(f"v_mul_f32 v{U}, v{PQ}, v{Z}")
    for jj in range(8):
        A(f"v_mul_f32 v{N+jj}, v{PQ}, v{AC+4*jj}")
    for r in range(1,4):
        A(f"v_fmac_f32 v{U}, v{PQ+r}, v{Z+r}")
        for jj in range(8): A(f"v_fmac_f32 v{N+jj}, v{PQ+r}, v{AC+4*jj+r}")
    A(f"v_mov_b32 v{U+1}, v{U}")
    A("s_nop 0")
    for jj in range(4): A(f"v_permlane32_swap_b32 v{N+jj}, v{N+jj+4}")
    A(f"v_permlane32_swap_b32 v{U}, v{U+1}")
    A("s_nop 1")
    A(f"v_add_f32 v{U}, v{U}, v{U+1}")
    for jj in range(4): A(f"v_add_f32 v{N+jj}, v{N+jj}, v{N+jj+4}")
    A(f"v_mov_b32 v{U+1}, v{U}")
    A("s_nop 0")
    for jj in range(2): A(f"v_permlane16_swap_b32 v{N+jj}, v{N+jj+2}")
    A(f"v_permlane16_swap_b32 v{U}, v{U+1}")
    A("s_nop 1")
    for jj in range(2): A(f"v_add_f32 v{N+jj}, v{N+jj}, v{N+jj+2}")
    A(f"v_add_f32 v{N+2}, v{U}, v{U+1}")
    if hand:
        A(f"s_cmp_eq_u32 {sM}, 0"); A("s_cbranch_scc1 L_poll0")
        C("publish: bit0 of every word = flipped old bit, bit1 of the first word = one bit of den")
        A(f"v_lshrrev_b32 v{U}, v{vL}, v{N+2}")
        A(f"v_lshl_or_b32 v{U}, v{U}, 1, v{OLD}")
        A(f"v_bfi_b32 v{N}, 3, v{U}, v{N}")
        A(f"v_bfi_b32 v{N+1}, 1, v{OLD+1}, v{N+1}")
        ev(2)
        A(f"buffer_store_dwordx2 {vr(N,2)}, v{vPA}, {sX}, {sSL} offen sc1")
        ev(3); ev(4); ev(5); ev(6)
        if trace: A(f"s_mov_b32 {sTK}, 0")
        A("s_branch L_fin")
        A("L_poll0:")
        ev(2); ev(3)
        if trace: A(f"s_mov_b32 {sTK}, 7")
        S=N+4
        def pl(base):
            for s in range(1,8): A(f"buffer_load_dwordx2 {vr(base+2*s,2)}, v{vPA}, {sX}, {sSL} offen offset:{512*s} sc1")
        def pc(base, extra):
            A(f"v_mov_b32 v{S}, v{N}"); A(f"v_mov_b32 v{S+1}, v{N+1}"); A(f"v_mov_b32 v{S+2}, v{N+2}"); A(f"v_mov_b32 v{U+1}, 1")
            for s in range(1,8):
                w0=base+2*s; w1=w0+1
                A(f"s_waitcnt vmcnt({7-s+extra})")
                A(f"v_and_b32 v{U}, 2, v{w0}")
                A(f"v_cmp_ne_u32 vcc, 0, v{U}")
                A(f"v_xor_b32 v{U+2}, v{w0}, v{OLD+2*s-2}"); A(f"v_xor_b32 v{U+3}, v{w1}, v{OLD+2*s-1}")
                A(f"v_add_f32 v{S+2}, vcc_lo, v{S+2}")
                A(f"v_and_b32 v{U+1}, v{U+1}, v{U+2}"); A(f"v_and_b32 v{U+1}, v{U+1}, v{U+3}")
                A(f"v_and_b32 v{U+2}, -4, v{w0}"); A(f"v_and_b32 v{U+3}, -2, v{w1}")
                A(f"v_add_f32 v{S}, v{S}, v{U+2}"); A(f"v_add_f32 v{S+1}, v{S+1}, v{U+3}")
            A(f"v_cmp_eq_u32 vcc, 0, v{U+1}")
            A("s_nop 4")
            A("s_cbranch_vccz L_sum")
        if poll==1:
            A("L_poll:")
            ev(4)
            pl(AC); pc(AC,0)
            if psleep: A(f"s_sleep {psleep}")
        else:
            pl(AC)
            A("L_poll:")
            ev(4)
            pl(AC+16); pc(AC,7)
            pl(AC); pc(AC+16,7)
        A(f"s_sub_u32 {sCAP}, {sCAP}, 1"); A("s_cbranch_scc0 L_poll")
        A("s_branch L_end")
        A("L_sum:")
        N=S
    else:
        A(f"v_lshrrev_b32 v{U}, v{vL}, v{N+2}")
        A(f"v_bfi_b32 v{N}, 1, v{U}, v{N}")
        A(f"s_lshl_b32 s18, {sM}, 9"); A(f"s_add_u32 s18, s18, {sSL}")
        ev(2)
        A(f"buffer_store_dwordx2 {vr(N,2)}, v{vPA}, {sX}, s18 offen sc1")
        A(f"s_mov_b32 {sTK}, 1")
        A("s_waitcnt vmcnt(0)")
        ev(3)
        A(f"s_atomic_add {sTK}, {sAR}, 4 glc")
        A("s_waitcnt lgkmcnt(0)")
        ev(4); ev(5); ev(6)
        A(f"s_cmp_lg_u32 {sTK}, {MEM-1}"); A("s_cbranch_scc1 L_fin")
        for s in range(8):
            A(f"buffer_load_dwordx2 {vr(AC+4*s,2)}, v{vPA}, {sX}, {sSL} offen offset:{s*512} sc1")
        for s in range(8):
            A(f"s_waitcnt vmcnt({7-s})")
            A(f"v_and_b32 v{U}, 1, v{AC+4*s}")
            A(f"v_cmp_ne_u32 vcc, 0, v{U}")
            if s==0: A(f"v_mov_b32 v{N}, v{AC}"); A(f"v_mov_b32 v{N+1}, v{AC+1}"); A(f"v_mov_b32 v{N+2}, vcc_lo")
            else: A(f"v_add_f32 v{N}, v{N}, v{AC+4*s}"); A(f"v_add_f32 v{N+1}, v{N+1}, v{AC+4*s+1}"); A(f"v_add_f32 v{N+2}, vcc_lo, v{N+2}")
    ev(5)
    C("out = bf16( bf16(num) / bf16(bf16(den) + eps) )")
    rnd4(N)
    A(f"v_add_f32 v{N+2}, {sEPS}, v{N+2}")
    A(f"v_cvt_pk_bf16_f32 v{N+2}, v{N+2}, v{N+2}"); A(f"v_lshlrev_b32 v{N+2}, 16, v{N+2}")
    D=N+2
    for i in range(2):
        n=N+i; a,b2,c,d2,e=U,U+1,U+2,U+3,U+4
        A(f"v_div_scale_f32 v{a}, s[6:7], v{D}, v{D}, v{n}")
        A(f"v_div_scale_f32 v{b2}, vcc, v{n}, v{D}, v{n}")
        A(f"v_rcp_f32 v{c}, v{a}")
        A("s_nop 0")
        A(f"v_fma_f32 v{d2}, -v{a}, v{c}, 1.0")
        A(f"v_fma_f32 v{c}, v{d2}, v{c}, v{c}")
        A(f"v_mul_f32 v{d2}, v{b2}, v{c}")
        A(f"v_fma_f32 v{e}, -v{a}, v{d2}, v{b2}")
        A(f"v_fma_f32 v{d2}, v{e}, v{c}, v{d2}")
        A(f"v_fma_f32 v{a}, -v{a}, v{d2}, v{b2}")
        A(f"v_div_fmas_f32 v{a}, v{a}, v{c}, v{d2}")
        A(f"v_div_fixup_f32 v{n}, v{a}, v{D}, v{n}")
    A(f"v_cvt_pk_bf16_f32 v{N}, v{N}, v{N+1}")
    ev(6)
    A(f"buffer_store_dword v{N}, v{vQA}, {sQ}, {sQO} offen {opol}")
    A("L_fin:")
    if stamp:
        A("s_waitcnt vmcnt(0)")
        A("s_memrealtime s[52:53]"); A("s_memtime s[58:59]")
        A("s_getreg_b32 s54, hwreg(HW_REG_XCC_ID)")
        A("s_getreg_b32 s55, hwreg(HW_REG_HW_ID)")
        A("s_waitcnt lgkmcnt(0)")
        A("s_add_u32 s28, s16, 0x20000000"); A("s_addc_u32 s29, s17, 0"); A("s_mov_b32 s30, 0x1000000")
        A(f"s_mul_i32 s18, s2, {W}"); A(f"s_add_u32 s18, s18, {sW}"); A("s_lshl_b32 s18, s18, 6")
        for i in range(16): A(f"v_mov_b32 v{AC+i}, s{48+i}")
        A(f"v_mov_b32 v{U}, 0")
        for i in range(4): A(f"buffer_store_dwordx4 {vr(AC+4*i,4)}, v{U}, {sX}, s18 offen offset:{16*i}")
        if trace:
            A(f"v_writelane_b32 v{TR}, s50, 62"); A(f"v_writelane_b32 v{TR}, s54, 61"); A(f"v_writelane_b32 v{TR}, s55, 60"); A(f"v_writelane_b32 v{TR}, {sN}, 59")
            for i in range(8): A(f"v_writelane_b32 v{TR}, s{80+2*i}, {48+i}")
            A(f"v_writelane_b32 v{TR}, s100, 56")
            A(f"v_writelane_b32 v{TR}, s98, 44"); A(f"v_writelane_b32 v{TR}, s100, 45"); A(f"v_writelane_b32 v{TR}, s60, 46"); A(f"v_writelane_b32 v{TR}, s62, 47")
            A(f"v_writelane_b32 v{TR}, s52, 57"); A(f"v_writelane_b32 v{TR}, {sTK}, 58")
            A("s_lshl_b32 s18, s18, 2"); A("s_add_u32 s18, s18, 0x100000"); A(f"v_lshlrev_b32 v{U}, 2, v{vL}")
            A(f"buffer_store_dword v{TR}, v{U}, {sX}, s18 offen")
    A("L_end:"); A("s_endpgm")
    acc=min(256,(nv+3)//4*4)
    A('.section .rodata,"a"'); A(".p2align 6"); A(f".amdhsa_kernel {KN}")
    A(f"  .amdhsa_next_free_vgpr {nv}"); A(f"  .amdhsa_next_free_sgpr {102 if (trace or rt) else 80}"); A(f"  .amdhsa_accum_offset {acc}")
    A("  .amdhsa_group_segment_fixed_size 0"); A("  .amdhsa_kernarg_size 56"); A("  .amdhsa_user_sgpr_count 2"); A("  .amdhsa_user_sgpr_kernarg_segment_ptr 1"); A("  .amdhsa_system_sgpr_workgroup_id_x 1")
    A("  .amdhsa_float_denorm_mode_32 3")
    A(".end_amdhsa_kernel")
    return "\n".join(o)+"\n"
if __name__=="__main__":
    from build import build
    import os
    os.makedirs("k",exist_ok=True)
    names=[]
    for spec in sys.argv[1:]:
        kw={}
        for p in spec.split(","):
            k,v=p.split("=")
            kw[k]= v if k in ("LV","pat","RK") else int(v) if v.isdigit() else v.replace("+"," ").replace("none","")
        name="k/g6_"+spec.replace("=","").replace(",","_").replace("+","")
        open(name+".s","w").write(gen(**kw))
        build(name+".s")
        names.append(name)
    print(" ".join(names))
```

```python
import sys
def probe_text(name="probe_kernel", offk=0, offv=0):
    o=[];A=o.append
    A(".text"); A(f".globl {name}"); A(".p2align 8"); A(f".type {name},@function"); A(f"{name}:")
    A("s_cmp_ge_u32 s2, 8"); A("s_cbranch_scc1 P_end")
    A("s_load_dwordx4 s[4:7], s[0:1], 8"); A("s_load_dwordx2 s[14:15], s[0:1], 40"); A("s_waitcnt lgkmcnt(0)")
    A("s_mov_b32 s44, s14"); A("s_mov_b32 s45, s15"); A("s_mov_b32 s46, 256"); A("s_mov_b32 s47, 0x00020000")
    A("s_mov_b32 s20, s4"); A("s_mov_b32 s21, s5"); A("s_mov_b32 s22, 0x10000000"); A("s_mov_b32 s23, 0x00020000")
    A("s_mov_b32 s24, s6"); A("s_mov_b32 s25, s7"); A("s_mov_b32 s26, 0x10000000"); A("s_mov_b32 s27, 0x00020000")
    A("s_getreg_b32 s54, hwreg(HW_REG_XCC_ID)"); A("s_and_b32 s54, s54, 7"); A("s_lshl_b32 s54, s54, 2")
    A("v_mov_b32 v1, 0")
    for n,(srd,off) in enumerate((("s[20:23]",offk),("s[24:27]",offv))):
        A(f"s_mov_b32 s53, {off+65536}")
        A(f"buffer_load_dword v2, v1, {srd}, s53 offen nt"); A("s_waitcnt vmcnt(0)")
        A("s_mov_b32 s52, 0")
        A("s_mov_b32 s55, -1")
        for i in range(8):
            A(f"s_mov_b32 s53, {off+i*128}")
            A("s_memtime s[48:49]"); A("s_waitcnt lgkmcnt(0)")
            A(f"buffer_load_dword v2, v1, {srd}, s53 offen nt"); A("s_waitcnt vmcnt(0)")
            A("s_memtime s[50:51]"); A("s_waitcnt lgkmcnt(0)")
            A("s_sub_u32 s50, s50, s48"); A("s_min_u32 s50, s50, 1100"); A("s_add_u32 s52, s52, s50")
        A("s_lshr_b32 s52, s52, 3")
        A("v_mov_b32 v3, s52")
        A(f"buffer_store_dword v3, v1, s[44:47], s54 offen offset:{32*n}"); A("s_waitcnt vmcnt(0)")
    A("P_end:"); A("s_endpgm")
    A(f'''.section .rodata,"a"
.p2align 6
.amdhsa_kernel {name}
  .amdhsa_next_free_vgpr 8
  .amdhsa_next_free_sgpr 64
  .amdhsa_accum_offset 8
  .amdhsa_group_segment_fixed_size 0
  .amdhsa_kernarg_size 56
  .amdhsa_user_sgpr_count 2
  .amdhsa_user_sgpr_kernarg_segment_ptr 1
  .amdhsa_system_sgpr_workgroup_id_x 1
.end_amdhsa_kernel''')
    return "\n".join(o)+"\n"
if __name__=="__main__":
    s=open('k/r0_1.s').read()
    l="; @launch grid=(256,1,1) block=(256,1,1) lds=0"
    real="; @launch kernel=standalone__linear_kernel_rfa__decode_kernel grid=(256,1,1) block=(256,1,1) lds=0"
    pr="; @launch kernel=probe_kernel grid=(8,1,1) block=(64,1,1) lds=0"
    for i in range(3): open(f'k/pq{i}.s','w').write(s.replace(l,real+"\n"+pr)+probe_text())
    t='; @launch grid=(8,1,1) block=(64,1,1) lds=0\n.amdgcn_target "amdgcn-amd-amdhsa--gfx950"\n'+probe_text("standalone__linear_kernel_rfa__decode_kernel")
    open('k/probe8.s','w').write(t)
    from build import build
    build('k/pq0.s'); build('k/probe8.s')
```

```python
import sys, struct
KN="standalone__linear_kernel_rfa__decode_kernel"
def f2u(x): return struct.unpack("<I",struct.pack("<f",x))[0]
SCALE=0x3e9837f0
LOG2E=f2u(1.4426950408889634)
EPSBF=0x35860000
HDR="""; RFA (FAVOR+) linear-attention decode, B=4 H=32 Sk=8192 D=128 M=16, bf16.
"""
def gen(LV="211", pol="nt", stamp=0, trace=0, spincap=1000000, opol="", kpos=2, cst=256,
        pat="abch.kde.ljigfm.0321465.4.2.36.0", mrot=0, wgc=1, hand=1, pro="okv", psleep=0, ldsonly=0, baronly=0, barpos=0, rt=0, fin=0, early=0, dbg=0, RK=None, nb=0, fake=0, pad=0, poll=1, idp=0, delay=0, prot=0, onlyadd=0, fl1=0, j0=4, warm=0, opl='sc1', late=0):
    W=4; NWG=256; MEM=8
    LV=[int(c,16) for c in str(LV)] if str(LV)!="0" else []
    assert all(z<7 for z in LV)
    ST=64-sum(LV)-fin
    if RK is not None:
        RK=[int(c,16) for c in str(RK)]; assert len(RK)==8 and (sum(RK)+nb)%8==0 and not wgc and not early
        ST=64-(sum(RK)+nb)//8-fin; LV=[]
    NL=len(LV)
    f=pat.split(".")
    ib=[8+ord(c)-97 for c in f[0]]; mb=[8+ord(c)-97 for c in f[1]]; tb=[8+ord(c)-97 for c in f[2]]
    hb=[int(c) for c in f[3]]; hx,hxs,hr,hrs=map(int,f[4:8])
    assert sorted(ib+mb+tb)==list(range(8,21)) and sorted(hb)==list(range(7))
    def scat(x,bits): return sum(((x>>k)&1)<<p for k,p in enumerate(bits))
    tstart=[]; acc_=ST
    for z in LV: tstart.append(acc_); acc_+=z
    CTR=0x200000
    o=[]; A=o.append
    def C(t): A("; "+t)
    A(HDR.rstrip())
    A(f"; @launch grid=({NWG},1,1) block=({W*64},1,1) lds={256 if (wgc or ldsonly) else 0}")
    A('.amdgcn_target "amdgcn-amd-amdhsa--gfx950"')
    A(".text"); A(f".globl {KN}"); A(".p2align 8"); A(f".type {KN},@function"); A(f"{KN}:")
    vKA,vVA=1,2
    vMA,vMB=3,4
    vL=5
    CN=6; ON=8; PH=10; BT=12
    P=16; G=20; PQ=24; Z=28
    T=32; U=40; OM=48; AC=64
    KB=96; VB=112; QB=128
    vQA=144; vPA=145; vV0=146; vTAB=150; vCA=151; OLD=152; KB2=168; TR=KB2+32*fin
    nv=TR+1 if trace else (TR if fin else 166)
    sK,sV,sX,sQ="s[20:23]","s[24:27]","s[28:31]","s[44:47]"
    sOFF="s32"; sT="s33"; sHI="s34"; sL2E="s35"; sEPS="s36"; sPL="s37"; sPHI="s38"; sW="s3"
    sSC="s[40:41]"
    sR="s42"; sS="s43"; sTK="s64"; sFL="s65"; sH="s19"; sM="s66"; sCT="s[68:69]"; sFA="s[70:71]"; sFB="s67"; sN="s72"
    sLH="s78"; sHX="s79"; sFM="s39"; sSL="s73"; sQO="s74"; sCAP="s75"; sAR="s[76:77]"
    def vr(a,n): return f"v[{a}:{a+n-1}]"
    def ev(i):
        if trace: A(f"s_memrealtime s[{80+2*i}:{81+2*i}]")
    A(f"s_cmp_ge_u32 s2, {NWG}"); A("s_cbranch_scc1 L_end")
    if idp==1:
        A("s_and_b32 s18, s2, 7"); A("s_lshl_b32 s18, s18, 3"); A("s_bfe_u32 s19, s2, 0x30003"); A("s_or_b32 s18, s18, s19"); A("s_and_b32 s2, s2, 0xc0"); A("s_or_b32 s2, s2, s18")
    if idp==2:
        A("s_sub_u32 s2, 255, s2")
    if delay:
        A("s_and_b32 s18, s2, 7"); A(f"s_cmp_lg_u32 s18, {delay-1}"); A("s_cbranch_scc1 L_nodelay")
        A("s_mov_b32 s18, 40"); A("L_dly:"); A("s_sleep 127"); A("s_sub_u32 s18, s18, 1"); A("s_cbranch_scc0 L_dly"); A("L_nodelay:")
    A("s_load_dwordx8 s[4:11], s[0:1], 0")
    A("s_load_dwordx4 s[12:15], s[0:1], 32")
    A("s_load_dwordx2 s[16:17], s[0:1], 48")
    if stamp: A("s_memrealtime s[48:49]"); A("s_memtime s[56:57]")
    if rt:
        assert not trace and not stamp
        A("s_waitcnt lgkmcnt(0)")
        A("s_load_dwordx16 s[80:95], s[10:11], 4096")
        A("s_load_dwordx16 s[48:63], s[10:11], 4160")
        A("s_waitcnt lgkmcnt(0)")
        ib=["s80","s81","s82","s83"]; mb=["s84","s85","s86"]; tb=[f"s{87+k}" for k in range(6)]; hb=[f"s{52+k}" for k in range(7)]
        hx,hxs,hr,hrs,mrot="s94","s48","s95","s50","s93"
    A(f"v_lshrrev_b32 v{vKA}, 6, v0"); A(f"v_and_b32 v{vL}, 63, v0")
    A(f"v_readfirstlane_b32 {sW}, v{vKA}")
    if wgc:
        C("clear the workgroup's ticket mailbox")
        A(f"v_lshlrev_b32 v{U}, 2, v{vL}"); A(f"v_mov_b32 v{vCA}, 0"); A(f"ds_write_b32 v{U}, v{vCA}")
    C("per-lane byte offsets inside a 16-key tile")
    A(f"v_bfe_u32 v{U+2}, v0, 4, 2")
    A(f"v_lshlrev_b32 v{vKA}, 4, v{U+2}")
    def vscat(dst, src, pairs):
        k=0
        while k<len(pairs):
            lb,pos=pairs[k]; n=1
            while not rt and k+n<len(pairs) and pairs[k+n]==(lb+n,pos+n): n+=1
            A(f"v_bfe_u32 v{U+4}, v{src}, {lb}, {n}"); A(f"v_lshl_add_u32 v{dst}, v{U+4}, {pos}, v{dst}")
            k+=n
    vscat(vKA,0,[(2,ib[0]),(3,ib[1]),(0,ib[2]),(1,ib[3])])
    A(f"v_lshlrev_b32 v{vVA}, 4, v{vL}")
    if (ib[0],ib[1])!=(8,9):
        A(f"v_and_b32 v{vVA}, 15, v0"); A(f"v_lshlrev_b32 v{vVA}, 4, v{vVA}"); vscat(vVA,0,[(4,ib[0]),(5,ib[1])])
    vreg={}; voff={}
    if rt:
        A(f"v_lshl_add_u32 v{vV0+1}, 1, {ib[2]}, v{vVA}"); A(f"v_lshl_add_u32 v{vV0+2}, 1, {ib[3]}, v{vVA}"); A(f"v_lshl_add_u32 v{vV0+3}, 1, {ib[3]}, v{vV0+1}")
        vreg={0:vVA,1:vV0+1,2:vV0+2,3:vV0+3}; voff={0:0,1:0,2:0,3:0}
    for e in range(4):
        if rt: break
        x=scat(e,ib[2:]); lo=x&0xfff; hi=x-lo
        if hi==0: vreg[e]=vVA
        else:
            prev=[g for g in range(e) if (scat(g,ib[2:])&~0xfff)==hi]
            if prev: vreg[e]=vreg[prev[0]]
            else: vreg[e]=vV0+e; A(f"v_add_u32 v{vV0+e}, {hi:#x}, v{vVA}")
        voff[e]=lo
    A(f"v_and_b32 v{U+3}, 15, v0"); A(f"v_lshlrev_b32 v{vQA}, 4, v{U+2}"); A(f"v_lshl_add_u32 v{U+3}, v{U+3}, 8, v{vQA}")
    C("logical head = 4*group + wave; physical head, share (member) and trip table")
    A(f"s_lshr_b32 {sLH}, s2, 3"); A(f"s_lshl2_add_u32 {sLH}, {sLH}, {sW}")
    def sperm(dst, src, pos):
        k=0; first=True
        while k<len(pos):
            n=1
            while not rt and k+n<len(pos) and pos[k+n]==pos[k]+n: n+=1
            t_=dst if first else "s18"
            A(f"s_bfe_u32 {t_}, {src}, {k|(n<<16):#x}")
            if pos[k]: A(f"s_lshl_b32 {t_}, {t_}, {pos[k]}")
            if not first: A(f"s_or_b32 {dst}, {dst}, s18")
            first=False; k+=n
    sperm(sH,sLH,hb)
    A(f"s_lshr_b32 {sHX}, {sLH}, {hxs}"); A(f"s_mul_i32 {sHX}, {sHX}, {hx}")
    if mrot: A(f"s_add_u32 {sHX}, {sHX}, {mrot}")
    A(f"s_add_u32 {sTK}, {sHX}, s2")
    sperm(sT,sTK,mb)
    if hr:
        A(f"s_lshr_b32 s18, {sLH}, {hrs}"); A(f"s_mul_i32 s18, s18, {hr}"); A(f"v_xor_b32 v{U+1}, s18, v0")
    else: A(f"v_mov_b32 v{U+1}, v0")
    A(f"v_mov_b32 v{vTAB}, 0")
    vscat(vTAB,U+1,[(k,tb[k]) for k in range(6)])
    A(f"s_lshl_b32 s18, {sH}, 21")
    A(f"v_readlane_b32 {sOFF}, v{vTAB}, 0")
    A("s_mov_b32 s22, 0x200000"); A("s_mov_b32 s23, 0x00020000"); A("s_mov_b32 s26, 0x200000"); A("s_mov_b32 s27, 0x00020000")
    A("s_mov_b32 s30, 4096"); A("s_mov_b32 s31, 0x00020000")
    A(f"s_or_b32 {sOFF}, {sOFF}, {sT}")
    if trace==3: A("s_memrealtime s[60:61]")
    A("s_waitcnt lgkmcnt(0)"); ev(7)
    if (wgc and barpos==0) or baronly: A("s_barrier")
    A("s_mov_b32 s28, s10"); A("s_mov_b32 s29, s11")
    A("s_add_u32 s20, s6, s18"); A("s_addc_u32 s21, s7, 0")
    A("s_add_u32 s24, s8, s18"); A("s_addc_u32 s25, s9, 0")
    def loadK(j,KB=KB):
        if fake: A(f"buffer_load_dwordx4 {vr(KB+4*j,4)}, v{vreg[j]}, {sK}, {sOFF} offen offset:{voff[j]} {pol}")
        else: A(f"buffer_load_dwordx4 {vr(KB+4*j,4)}, v{vKA}, {sK}, {sOFF} offen offset:{64*j} {pol}")
    def loadV(e,VB=VB): A(f"buffer_load_dwordx4 {vr(VB+4*e,4)}, v{vreg[e]}, {sV}, {sOFF} offen offset:{voff[e]} {pol}")
    for n,c in enumerate(pro):
        for j in range(4):
            if c=='o': A(f"buffer_load_dwordx4 {vr(OM+4*j,4)}, v{U+3}, {sX}, 0 offen offset:{64*j}")
            if c=='k': loadK(j)
            if c=='v': loadV(j)
        if trace and n<2: A(f"s_memrealtime s[{98+2*n}:{99+2*n}]")
    ev(8)
    if prot==1: A(f"s_lshr_b32 {sM}, s2, 3"); A(f"s_add_u32 {sM}, {sM}, s2"); A(f"s_and_b32 {sM}, {sM}, 7")
    elif prot==2: A(f"s_add_u32 {sM}, {sLH}, s2"); A(f"s_and_b32 {sM}, {sM}, 7")
    elif prot>=8: A(f"s_add_u32 {sM}, s2, {prot-8}"); A(f"s_and_b32 {sM}, {sM}, 7")
    else: A(f"s_and_b32 {sM}, s2, 7")
    A("s_mov_b32 s28, s16"); A("s_mov_b32 s29, s17"); A(f"s_mov_b32 s30, {CTR+128*cst if onlyadd else 128*4096}")
    A("s_mov_b32 s44, s4"); A("s_mov_b32 s45, s5"); A("s_mov_b32 s46, 32768"); A("s_mov_b32 s47, 0x00020000")
    A(f"s_lshl_b32 {sQO}, {sH}, 8")
    A(f"s_lshl_b32 {sSL}, {sLH}, 12")
    A(f"s_and_b32 s18, {sLH}, {0x7c if wgc else 0x7f}"); A(f"s_mul_i32 s18, s18, {cst}"); A(f"s_add_u32 s18, s18, {CTR}"); A("s_add_u32 s68, s16, s18"); A("s_addc_u32 s69, s17, 0")
    if onlyadd: assert hand and not wgc; A("s_mov_b32 s9, s18"); A(f"v_mov_b32 v{vCA}, 0")
    if not hand:
        A(f"s_mul_i32 s18, {sLH}, {cst}"); A(f"s_add_u32 s18, s18, {CTR}"); A("s_add_u32 s76, s16, s18"); A("s_addc_u32 s77, s17, 0")
    A(f"s_lshr_b32 s18, {sLH}, 5"); A("s_lshl_b32 s18, s18, 2"); A("s_add_u32 s70, s14, s18"); A("s_addc_u32 s71, s15, 0")
    A(f"s_lshl_b32 {sFB}, 1, {sLH}")
    if wgc: A(f"s_and_b32 s18, {sLH}, 28"); A(f"s_lshl_b32 {sFM}, 1, s18"); A(f"s_or_b32 {sFM}, {sFM}, {sFB}")
    else: A(f"s_mov_b32 {sFM}, {sFB}")
    if warm&1:
        C("touch the hand-off page and q early through the scalar path (address translation only)")
        A(f"s_load_dword {sFL}, s[16:17], {sSL}")
    if warm&2:
        A(f"s_load_dword {sTK}, s[44:45], {sQO}")
    A(f"s_mov_b32 {sHI}, 0xffff0000"); A(f"s_mov_b32 {sL2E}, {LOG2E:#x}"); A(f"s_mov_b32 {sEPS}, {EPSBF:#x}")
    A(f"s_mov_b32 {sPL}, 0x05040100"); A(f"s_mov_b32 {sPHI}, 0x07060302")
    A(f"s_mov_b32 s40, {SCALE:#x}"); A(f"s_mov_b32 s41, {SCALE:#x}")
    A(f"s_mov_b32 {sCAP}, {spincap}")
    if dbg: A("s_mov_b32 s4, 0")
    if RK is not None: A("s_mov_b32 s4, 0"); A("s_mov_b32 s5, 0"); A("s_mov_b32 s8, 0")
    A(f"v_mov_b32 v{CN}, 0xbf00bf00"); A(f"v_mov_b32 v{CN+1}, 0xbf00bf00")
    A(f"v_mov_b32 v{ON}, 0x3f803f80"); A(f"v_mov_b32 v{ON+1}, 0x3f803f80")
    C("masks that keep the diagonal of the 16x16 Gram tile")
    A(f"v_and_b32 v{U}, 15, v0"); A(f"v_lshlrev_b32 v{U+1}, 2, v{U+2}"); A(f"v_sub_u32 v{U}, v{U}, v{U+1}")
    A(f"v_mov_b32 v{U+1}, 0xffff"); A(f"v_mov_b32 v{U+2}, {sHI}")
    A(f"v_mov_b32 v{vMA}, 0"); A(f"v_mov_b32 v{vMB}, 0")
    for r,(dst,src) in enumerate([(vMA,U+1),(vMA,U+2),(vMB,U+1),(vMB,U+2)]):
        A(f"v_cmp_eq_u32 vcc, {r}, v{U}"); A("s_nop 1"); A(f"v_cndmask_b32 v{dst}, v{dst}, v{src}, vcc")
    for i in range(32): A(f"v_mov_b32 v{AC+i}, 0")
    for i in range(4): A(f"v_mov_b32 v{Z+i}, 0")
    A(f"v_lshlrev_b32 v{vPA}, 3, v{vL}")
    A(f"v_mov_b32 v0, 0x3e800000")
    if stamp and trace!=3: A("s_memrealtime s[60:61]")
    if stamp: A("s_memrealtime s[62:63]")
    if pro[-1]=='o': A("s_waitcnt vmcnt(0)")
    elif pro[1]=='o': A("s_waitcnt vmcnt(4)")
    def scale4(src, dst, mid=None):
        for q in range(4):
            A(f"v_lshlrev_b32 v{U+2*q}, 16, v{src+q}"); A(f"v_and_b32 v{U+2*q+1}, {sHI}, v{src+q}")
        if mid: mid()
        for q in range(4): A(f"v_pk_mul_f32 {vr(U+2*q,2)}, {vr(U+2*q,2)}, {sSC}")
        for q in range(4): A(f"v_cvt_pk_bf16_f32 v{dst+q}, v{U+2*q}, v{U+2*q+1}")
    def rnd4(R):
        A(f"v_cvt_pk_bf16_f32 v{U}, v{R}, v{R+1}"); A(f"v_cvt_pk_bf16_f32 v{U+1}, v{R+2}, v{R+3}")
        A(f"v_lshlrev_b32 v{R}, 16, v{U}"); A(f"v_and_b32 v{R+1}, {sHI}, v{U}")
        A(f"v_lshlrev_b32 v{R+2}, 16, v{U+1}"); A(f"v_and_b32 v{R+3}, {sHI}, v{U+1}")
    def phi_tail(R):
        rnd4(R)
        for r in range(4): A(f"v_mul_f32 v{R+r}, {sL2E}, v{R+r}")
        for r in range(4): A(f"v_exp_f32 v{R+r}, v{R+r}")
        A("s_nop 0")
        rnd4(R)
        for r in range(4): A(f"v_fmaak_f32 v{R+r}, v{R+r}, v0, {EPSBF:#x}")
    def tile(last, KB=KB, VB=VB, extra=0):
        C("ks = bf16(k*scale); G += ks.ks^T; P += ks.omega^T")
        if early==1 and not last and NL:
            A(f"s_cmp_lg_u32 {sR}, 0"); A(f"s_cbranch_scc1 L_nc"); A(f"s_mov_b32 {sTK}, 1"); A(f"s_atomic_add {sTK}, {sCT}, 0 glc"); A("L_nc:")
        for j in range(4):
            A(f"s_waitcnt vmcnt({extra+(7-j if (last or kpos) else 7)})")
            t=T+4*(j%2)
            scale4(KB+4*j, t, None if (last or kpos) else (lambda: loadK(j)))
            A("s_nop 1")
            c = "0" if j==0 else vr(G,4)
            A(f"v_mfma_f32_16x16x32_bf16 {vr(G,4)}, {vr(t,4)}, {vr(t,4)}, {c}")
            c = "0" if j==0 else vr(P,4)
            A(f"v_mfma_f32_16x16x32_bf16 {vr(P,4)}, {vr(t,4)}, {vr(OM+4*j,4)}, {c}")
        if kpos==1 and not last:
            for j in range(4): loadK(j)
            A("s_nop 2")
        else: A("s_nop 6")
        C("x = bf16(P) - 0.5*bf16(diag G); phi = bf16(bf16(exp(bf16(x)))/4 + eps)")
        A(f"v_cvt_pk_bf16_f32 v{PH}, v{G}, v{G+1}"); A(f"v_cvt_pk_bf16_f32 v{PH+1}, v{G+2}, v{G+3}")
        A(f"v_and_b32 v{PH}, v{PH}, v{vMA}"); A(f"v_and_b32 v{PH+1}, v{PH+1}, v{vMB}")
        rnd4(P)
        A("s_nop 1")
        A(f"v_mfma_f32_16x16x16_bf16 {vr(P,4)}, {vr(PH,2)}, {vr(CN,2)}, {vr(P,4)}")
        A("s_nop 7")
        phi_tail(P)
        A(f"v_cvt_pk_bf16_f32 v{PH}, v{P}, v{P+1}"); A(f"v_cvt_pk_bf16_f32 v{PH+1}, v{P+2}, v{P+3}")
        if kpos==2 and not last:
            for j in range(4): loadK(j)
        if early==2 and not last and NL:
            A(f"s_cmp_lg_u32 {sR}, 0"); A(f"s_cbranch_scc1 L_nc"); A(f"s_mov_b32 {sTK}, 1"); A(f"s_atomic_add {sTK}, {sCT}, 0 glc"); A("L_nc:")
        A(f"s_waitcnt vmcnt({extra+(0 if (last or kpos>=3) else 4)})")
        if kpos==3 and not last:
            for j in range(4): loadK(j)
        V=VB
        def perm(jj):
            bt=BT+2*(jj%2); q=jj>>1; sel=sPHI if jj&1 else sPL
            A(f"v_perm_b32 v{bt}, v{V+4+q}, v{V+q}, {sel}")
            A(f"v_perm_b32 v{bt+1}, v{V+12+q}, v{V+8+q}, {sel}")
        C("z += phi^T.1 ; kv += phi^T.V")
        perm(0)
        A(f"v_mfma_f32_16x16x16_bf16 {vr(Z,4)}, {vr(PH,2)}, {vr(ON,2)}, {vr(Z,4)}")
        for jj in range(8):
            if jj<7: perm(jj+1)
            elif not last:
                for i in range(pad): A("s_nop 15")
                if kpos==4:
                    for j in range(4): loadK(j)
                for e in range(4): loadV(e)
            else: A("s_nop 0")
            bt=BT+2*(jj%2)
            A(f"v_mfma_f32_16x16x16_bf16 {vr(AC+4*jj,4)}, {vr(PH,2)}, {vr(bt,2)}, {vr(AC+4*jj,4)}")
    if trace:
        A(f"s_mov_b32 {sN}, 0"); A(f"v_mov_b32 v{TR}, 0"); A("s_waitcnt lgkmcnt(0)"); A(f"v_writelane_b32 v{TR}, s48, 63")
    C(f"{sS} = trip index of the tile loaded in this trip, {sR} = tiles left in the chunk after it, {sT} = share bits")
    A(f"s_mov_b32 {sS}, 1"); A(f"s_mov_b32 {sR}, {ST-2}")
    A(".p2align 3")
    A("L_loop:")
    if trace: A("s_memrealtime s[96:97]")
    A(f"v_readlane_b32 {sOFF}, v{vTAB}, {sS}")
    A(f"s_add_u32 {sS}, {sS}, 1")
    A(f"s_or_b32 {sOFF}, {sOFF}, {sT}")
    tile(False)
    if trace:
        A("s_waitcnt lgkmcnt(0)"); A(f"s_lshr_b32 s18, {sN}, 1"); A("s_min_u32 s18, s18, 35"); A("s_mov_b32 m0, s18"); A("s_nop 0"); A(f"v_writelane_b32 v{TR}, s96, m0"); A(f"s_add_u32 {sN}, {sN}, 1")
    A(f"s_sub_u32 {sR}, {sR}, 1")
    A("s_cbranch_scc1 L_next")
    C("one-off jobs run in the idle window between two static trips")
    J0=ST-j0
    A(f"s_sub_u32 s18, {sR}, {J0-1}"); A("s_cmp_lt_u32 s18, 2"); A("s_cbranch_scc1 L_job0")
    A(f"s_sub_u32 s18, {sR}, 8"); A("s_cmp_gt_u32 s18, 1"); A("s_cbranch_scc1 L_loop")
    A(f"s_cmp_eq_u32 s18, 0"); A("s_cbranch_scc1 L_job2")
    C("job1: fetch q")
    if fl1: A(f"s_load_dword {sFL}, {sFA}, 0")
    for j in range(4): A(f"buffer_load_dwordx4 {vr(QB+4*j,4)}, v{vQA}, {sQ}, {sQO} offen offset:{64*j}")
    A("s_branch L_loop")
    A("L_job0:")
    if warm: A("s_waitcnt lgkmcnt(0)")
    A(f"s_cmp_eq_u32 s18, 0"); A("s_cbranch_scc1 L_job0b")
    if hand:
        C("job0a: read what the hand-off slots hold now; a word is new once its lowest bit has flipped")
        if late:
            A(f"s_cmp_lg_u32 {sM}, 0"); A("s_cbranch_scc1 L_loop")
        else:
            A(f"s_cmp_eq_u32 {sM}, 0"); A("s_cbranch_scc1 L_job0p")
            A(f"s_lshl_b32 s18, {sM}, 9"); A(f"s_add_u32 {sSL}, {sSL}, s18")
            A(f"buffer_load_dwordx2 {vr(OLD,2)}, v{vPA}, {sX}, {sSL} offen {opl}")
            A("s_branch L_loop")
            A("L_job0p:")
        for s in range(1,8): A(f"buffer_load_dwordx2 {vr(OLD+2*s-2,2)}, v{vPA}, {sX}, {sSL} offen offset:{512*s} sc1")
        if onlyadd:
            C("clear the head's ticket counter (complete by the next trip's V wait)")
            A("s_mov_b64 exec, 1")
            A(f"buffer_store_dword v{vCA}, v{vCA}, {sX}, s9 offen sc1")
            A("s_mov_b64 exec, -1")
    A("s_branch L_loop")
    A("L_job0b:")
    C("job0b: member 0 clears the ticket counter, then raises its ready bit")
    if hand:
        if late:
            A(f"s_cmp_lg_u32 {sM}, 0"); A("s_cbranch_scc1 L_loop")
        else:
            A(f"s_cmp_eq_u32 {sM}, 0"); A("s_cbranch_scc1 L_job0q")
            A(f"v_not_b32 v{OLD}, v{OLD}"); A(f"v_not_b32 v{OLD+1}, v{OLD+1}"); A(f"v_and_b32 v{OLD}, 1, v{OLD}")
            A("s_branch L_loop")
            A("L_job0q:")
        if wgc: A(f"s_cmp_lg_u32 {sW}, 0"); A("s_cbranch_scc1 L_job0r")
        if not onlyadd:
            A(f"s_mov_b32 {sTK}, 0"); A(f"s_atomic_swap {sTK}, {sCT}, 0 glc")
            A("s_waitcnt lgkmcnt(0)")
        A("L_job0r:")
    else:
        A(f"s_cmp_lg_u32 {sM}, 0"); A("s_cbranch_scc1 L_loop")
        A("s_mov_b64 s[64:65], 0")
        A(f"s_atomic_swap_x2 s[64:65], {sAR}, 0 glc")
        A("s_waitcnt lgkmcnt(0)")
    if onlyadd==1:
        assert not stamp and not rt
        A("s_mov_b32 s48, s14"); A("s_mov_b32 s49, s15"); A("s_mov_b32 s50, 256"); A("s_mov_b32 s51, 0x00020000")
        A(f"s_lshr_b32 s18, {sLH}, 5"); A("s_lshl_b32 s18, s18, 2")
        A("s_mov_b64 exec, 1")
        A(f"v_mov_b32 v{vV0}, {sFB}")
        A(f"buffer_atomic_or v{vV0}, v{vCA}, s[48:51], s18 offen")
        A("s_mov_b64 exec, -1")
    else: A(f"s_atomic_or {sFB}, {sFA}, 0")
    A("s_branch L_loop")
    A("L_job2:")
    C("job2: phi_q (A=omega, B=qs: rows are m) and the ready check")
    if not fl1: A(f"s_load_dword {sFL}, {sFA}, 0")
    for j in range(4):
        scale4(QB+4*j, T+4*(j%2))
        A("s_nop 1")
        c = "0" if j==0 else vr(PQ,4)
        A(f"v_mfma_f32_16x16x32_bf16 {vr(PQ,4)}, {vr(OM+4*j,4)}, {vr(T+4*(j%2),4)}, {c}")
        c = "0" if j==0 else vr(G,4)
        A(f"v_mfma_f32_16x16x32_bf16 {vr(G,4)}, {vr(T+4*(j%2),4)}, {vr(T+4*(j%2),4)}, {c}")
    A("s_nop 7")
    rnd4(PQ); rnd4(G)
    for r in range(4): A(f"v_fma_f32 v{PQ+r}, v{G+r}, -0.5, v{PQ+r}")
    phi_tail(PQ); rnd4(PQ)
    A("s_mov_b32 s44, s12"); A("s_mov_b32 s45, s13")
    C("output lane offset")
    A(f"v_and_b32 v{vQA}, 15, v{vL}"); A(f"v_lshrrev_b32 v{U}, 4, v{vL}")
    A(f"v_lshlrev_b32 v{vQA}, 4, v{vQA}"); A(f"v_lshl_add_u32 v{vQA}, v{U}, 2, v{vQA}")
    A("s_waitcnt lgkmcnt(0)")
    if wgc and barpos==1: A("s_barrier")
    A("L_chk:")
    A(f"s_and_b32 {sFL}, {sFL}, {sFM}"); A(f"s_cmp_eq_u32 {sFL}, {sFM}"); A("s_cbranch_scc1 L_loop")
    A("s_sleep 8")
    A(f"s_mov_b32 {sFL}, 0"); A(f"s_atomic_{'add' if onlyadd else 'or'} {sFL}, {sFA}, 0 glc"); A("s_waitcnt lgkmcnt(0)")
    A(f"s_sub_u32 {sCAP}, {sCAP}, 1"); A("s_cbranch_scc0 L_chk")
    A("s_branch L_end")
    A("L_next:")
    if RK is not None:
        st=[sum(RK[:t]) for t in range(8)]
        AT=sum(a<<(8*t) for t,a in enumerate(st)); SZ=sum(z<<(4*t) for t,z in enumerate(RK))
        C("s4 = next leftover tile of the drawn run, s5 = tiles left in it, s8 = draws so far")
        A("L_next2:")
        A("s_sub_u32 s5, s5, 1"); A("s_cbranch_scc0 L_run")
        if not nb: A("s_cmp_lg_u32 s8, 0"); A("s_cbranch_scc1 L_last"); A("s_mov_b32 s8, 1")
        A(f"s_mov_b32 {sTK}, 1"); A(f"s_atomic_add {sTK}, {sCT}, 0 glc")
        A(f"s_mov_b32 s6, {AT&0xffffffff:#x}"); A(f"s_mov_b32 s7, {AT>>32:#x}")
        A("s_waitcnt lgkmcnt(0)")
        if nb:
            A(f"s_cmp_ge_u32 {sTK}, {8+nb}"); A("s_cbranch_scc1 L_last")
            A(f"s_add_u32 s4, {sTK}, {sum(RK)-8}"); A("s_mov_b32 s5, 0")
            A(f"s_cmp_ge_u32 {sTK}, 8"); A("s_cbranch_scc1 L_run")
        A(f"s_lshl_b32 s18, {sTK}, 3"); A("s_lshr_b64 s[6:7], s[6:7], s18"); A("s_and_b32 s4, s6, 0xff")
        A(f"s_lshl_b32 s18, {sTK}, 2"); A(f"s_lshr_b32 s5, {SZ:#x}, s18"); A("s_and_b32 s5, s5, 15")
        A("s_branch L_next2")
        A("L_run:")
        A(f"s_add_u32 {sFL}, s4, {sHX}")
        sperm(sT, sFL, mb)
        A(f"s_lshr_b32 {sS}, s4, 3"); A(f"s_add_u32 {sS}, {sS}, {ST}"); A(f"s_mov_b32 {sR}, 0")
        A("s_add_u32 s4, s4, 1")
        A("s_branch L_loop")
    if NL:
        if wgc:
            C("first wave of the workgroup to get here draws the ticket, the others read it from LDS")
            A("s_mov_b64 exec, 1")
            A(f"v_mov_b32 v{U}, 1")
            A(f"ds_max_rtn_u32 v{U}, v{vCA}, v{U}")
            A("L_mail:")
            A("s_waitcnt lgkmcnt(0)")
            A(f"v_readfirstlane_b32 {sTK}, v{U}")
            A(f"s_cmp_eq_u32 {sTK}, 1"); A("s_cbranch_scc0 L_mail2")
            A(f"ds_read_b32 v{U}, v{vCA}")
            A(f"s_sub_u32 {sCAP}, {sCAP}, 1"); A("s_cbranch_scc0 L_mail")
            A("s_branch L_end")
            A("L_mail2:")
            A(f"s_sub_u32 {sTK}, {sTK}, 2"); A("s_cbranch_scc0 L_have")
            A(f"s_mov_b32 {sTK}, 1"); A(f"s_atomic_add {sTK}, {sCT}, 0 glc")
            A("s_waitcnt lgkmcnt(0)")
            A(f"s_min_u32 {sTK}, {sTK}, {MEM*NL}")
            A(f"s_add_u32 s18, {sTK}, 2"); A(f"v_mov_b32 v{U}, s18")
            A(f"ds_write_b32 v{vCA}, v{U}")
            A("L_have:")
            A("s_mov_b64 exec, -1")
            A(f"v_add_u32 v{vCA}, 4, v{vCA}")
        else:
            if not early and dbg not in (2,3): A(f"s_mov_b32 {sTK}, 1"); A(f"s_atomic_add {sTK}, {sCT}, 0 glc")
            A("s_waitcnt lgkmcnt(0)")
            if dbg:
                if dbg==2: A(f"s_mul_i32 {sTK}, {sLH}, 0x9e3779"); A(f"s_lshr_b32 {sTK}, {sTK}, 11"); A(f"s_add_u32 {sTK}, {sTK}, {sM}"); A(f"s_and_b32 {sTK}, {sTK}, 7")
                else: A(f"s_mov_b32 {sTK}, {sM}")
                A(f"s_add_u32 {sTK}, {sTK}, s4"); A("s_add_u32 s4, s4, 8")
        A(f"s_cmp_ge_u32 {sTK}, {MEM*NL}"); A("s_cbranch_scc1 L_last")
        A(f"s_add_u32 {sFL}, {sTK}, {sHX}")
        sperm(sT, sFL, mb)
        if all(z==1 for z in LV):
            A(f"s_lshr_b32 {sS}, {sTK}, 3"); A(f"s_add_u32 {sS}, {sS}, {ST}"); A(f"s_mov_b32 {sR}, 0")
        else:
            A(f"s_mov_b32 {sS}, {tstart[0]}"); A(f"s_mov_b32 {sR}, {LV[0]-1}")
            for L in range(1,NL):
                A(f"s_cmp_ge_u32 {sTK}, {MEM*L}"); A(f"s_cselect_b32 {sS}, {tstart[L]}, {sS}")
                if LV[L]!=LV[L-1]: A(f"s_cselect_b32 {sR}, {LV[L]-1}, {sR}")
        A("s_branch L_loop")
    A("L_last:"); ev(0); ev(1)
    if fin:
        C("the wave's own closing tiles go out at once, beside the tile already in flight")
        A(f"s_add_u32 {sFL}, {sHX}, s2"); sperm(sT, sFL, mb)
        for i in range(fin):
            A(f"v_readlane_b32 {sOFF}, v{vTAB}, {64-fin+i}"); A("s_nop 0"); A(f"s_or_b32 {sOFF}, {sOFF}, {sT}")
            for j in range(4): loadK(j,KB2+32*i)
            for e in range(4): loadV(e,KB2+32*i+16)
        tile(True, extra=8*fin)
        for i in range(fin): tile(True, KB2+32*i, KB2+32*i+16, extra=8*(fin-1-i))
    elif late:
        C("what the wave's own slot holds now (only its owner ever writes it)")
        A(f"s_lshl_b32 s18, {sM}, 9"); A(f"s_add_u32 {sSL}, {sSL}, s18")
        A(f"buffer_load_dwordx2 {vr(QB,2)}, v{vPA}, {sX}, {sSL} offen {opl}")
        tile(True, extra=1)
    else: tile(True)
    if trace: A(f"s_add_u32 {sN}, {sN}, {1+fin}")
    if stamp: A("s_memrealtime s[50:51]")
    C("contract with phi_q, then fold the four lane groups")
    if late:
        A("s_waitcnt vmcnt(0)")
        A(f"v_not_b32 v{QB}, v{QB}"); A(f"v_not_b32 v{QB+1}, v{QB+1}"); A(f"v_and_b32 v{QB}, 1, v{QB}")
        A("s_nop 2")
    else: A("s_nop 6")
    N=T
    A(f"v_mul_f32 v{U}, v{PQ}, v{Z}")
    for jj in range(8):
        A(f"v_mul_f32 v{N+jj}, v{PQ}, v{AC+4*jj}")
    for r in range(1,4):
        A(f"v_fmac_f32 v{U}, v{PQ+r}, v{Z+r}")
        for jj in range(8): A(f"v_fmac_f32 v{N+jj}, v{PQ+r}, v{AC+4*jj+r}")
    A(f"v_mov_b32 v{U+1}, v{U}")
    A("s_nop 0")
    for jj in range(4): A(f"v_permlane32_swap_b32 v{N+jj}, v{N+jj+4}")
    A(f"v_permlane32_swap_b32 v{U}, v{U+1}")
    A("s_nop 1")
    A(f"v_add_f32 v{U}, v{U}, v{U+1}")
    for jj in range(4): A(f"v_add_f32 v{N+jj}, v{N+jj}, v{N+jj+4}")
    A(f"v_mov_b32 v{U+1}, v{U}")
    A("s_nop 0")
    for jj in range(2): A(f"v_permlane16_swap_b32 v{N+jj}, v{N+jj+2}")
    A(f"v_permlane16_swap_b32 v{U}, v{U+1}")
    A("s_nop 1")
    for jj in range(2): A(f"v_add_f32 v{N+jj}, v{N+jj}, v{N+jj+2}")
    A(f"v_add_f32 v{N+2}, v{U}, v{U+1}")
    if hand:
        A(f"s_cmp_eq_u32 {sM}, 0"); A("s_cbranch_scc1 L_poll0")
        C("publish: bit0 of every word = flipped old bit, bit1 of the first word = one bit of den")
        A(f"v_lshrrev_b32 v{U}, v{vL}, v{N+2}")
        OW=QB if late else OLD
        A(f"v_lshl_or_b32 v{U}, v{U}, 1, v{OW}")
        A(f"v_bfi_b32 v{N}, 3, v{U}, v{N}")
        A(f"v_bfi_b32 v{N+1}, 1, v{OW+1}, v{N+1}")
        ev(2)
        A(f"buffer_store_dwordx2 {vr(N,2)}, v{vPA}, {sX}, {sSL} offen sc1")
        ev(3); ev(4); ev(5); ev(6)
        if trace: A(f"s_mov_b32 {sTK}, 0")
        A("s_branch L_fin")
        A("L_poll0:")
        ev(2); ev(3)
        if trace: A(f"s_mov_b32 {sTK}, 7")
        S=N+4
        def pl(base):
            for s in range(1,8): A(f"buffer_load_dwordx2 {vr(base+2*s,2)}, v{vPA}, {sX}, {sSL} offen offset:{512*s} sc1")
        def pc(base, extra):
            A(f"v_mov_b32 v{S}, v{N}"); A(f"v_mov_b32 v{S+1}, v{N+1}"); A(f"v_mov_b32 v{S+2}, v{N+2}"); A(f"v_mov_b32 v{U+1}, 1")
            for s in range(1,8):
                w0=base+2*s; w1=w0+1
                A(f"s_waitcnt vmcnt({7-s+extra})")
                A(f"v_and_b32 v{U}, 2, v{w0}")
                A(f"v_cmp_ne_u32 vcc, 0, v{U}")
                A(f"v_xor_b32 v{U+2}, v{w0}, v{OLD+2*s-2}"); A(f"v_xor_b32 v{U+3}, v{w1}, v{OLD+2*s-1}")
                A(f"v_add_f32 v{S+2}, vcc_lo, v{S+2}")
                A(f"v_and_b32 v{U+1}, v{U+1}, v{U+2}"); A(f"v_and_b32 v{U+1}, v{U+1}, v{U+3}")
                A(f"v_and_b32 v{U+2}, -4, v{w0}"); A(f"v_and_b32 v{U+3}, -2, v{w1}")
                A(f"v_add_f32 v{S}, v{S}, v{U+2}"); A(f"v_add_f32 v{S+1}, v{S+1}, v{U+3}")
            A(f"v_cmp_eq_u32 vcc, 0, v{U+1}")
            A("s_nop 4")
            A("s_cbranch_vccz L_sum")
        if poll==1:
            A("L_poll:")
            ev(4)
            pl(AC); pc(AC,0)
            if psleep: A(f"s_sleep {psleep}")
        else:
            pl(AC)
            A("L_poll:")
            ev(4)
            pl(AC+16); pc(AC,7)
            pl(AC); pc(AC+16,7)
        A(f"s_sub_u32 {sCAP}, {sCAP}, 1"); A("s_cbranch_scc0 L_poll")
        A("s_branch L_end")
        A("L_sum:")
        N=S
    else:
        A(f"v_lshrrev_b32 v{U}, v{vL}, v{N+2}")
        A(f"v_bfi_b32 v{N}, 1, v{U}, v{N}")
        A(f"s_lshl_b32 s18, {sM}, 9"); A(f"s_add_u32 s18, s18, {sSL}")
        ev(2)
        A(f"buffer_store_dwordx2 {vr(N,2)}, v{vPA}, {sX}, s18 offen sc1")
        A(f"s_mov_b32 {sTK}, 1")
        A("s_waitcnt vmcnt(0)")
        ev(3)
        A(f"s_atomic_add {sTK}, {sAR}, 4 glc")
        A("s_waitcnt lgkmcnt(0)")
        ev(4); ev(5); ev(6)
        A(f"s_cmp_lg_u32 {sTK}, {MEM-1}"); A("s_cbranch_scc1 L_fin")
        for s in range(8):
            A(f"buffer_load_dwordx2 {vr(AC+4*s,2)}, v{vPA}, {sX}, {sSL} offen offset:{s*512} sc1")
        for s in range(8):
            A(f"s_waitcnt vmcnt({7-s})")
            A(f"v_and_b32 v{U}, 1, v{AC+4*s}")
            A(f"v_cmp_ne_u32 vcc, 0, v{U}")
            if s==0: A(f"v_mov_b32 v{N}, v{AC}"); A(f"v_mov_b32 v{N+1}, v{AC+1}"); A(f"v_mov_b32 v{N+2}, vcc_lo")
            else: A(f"v_add_f32 v{N}, v{N}, v{AC+4*s}"); A(f"v_add_f32 v{N+1}, v{N+1}, v{AC+4*s+1}"); A(f"v_add_f32 v{N+2}, vcc_lo, v{N+2}")
    ev(5)
    C("out = bf16( bf16(num) / bf16(bf16(den) + eps) )")
    rnd4(N)
    A(f"v_add_f32 v{N+2}, {sEPS}, v{N+2}")
    A(f"v_cvt_pk_bf16_f32 v{N+2}, v{N+2}, v{N+2}"); A(f"v_lshlrev_b32 v{N+2}, 16, v{N+2}")
    D=N+2
    for i in range(2):
        n=N+i; a,b2,c,d2,e=U,U+1,U+2,U+3,U+4
        A(f"v_div_scale_f32 v{a}, s[6:7], v{D}, v{D}, v{n}")
        A(f"v_div_scale_f32 v{b2}, vcc, v{n}, v{D}, v{n}")
        A(f"v_rcp_f32 v{c}, v{a}")
        A("s_nop 0")
        A(f"v_fma_f32 v{d2}, -v{a}, v{c}, 1.0")
        A(f"v_fma_f32 v{c}, v{d2}, v{c}, v{c}")
        A(f"v_mul_f32 v{d2}, v{b2}, v{c}")
        A(f"v_fma_f32 v{e}, -v{a}, v{d2}, v{b2}")
        A(f"v_fma_f32 v{d2}, v{e}, v{c}, v{d2}")
        A(f"v_fma_f32 v{a}, -v{a}, v{d2}, v{b2}")
        A(f"v_div_fmas_f32 v{a}, v{a}, v{c}, v{d2}")
        A(f"v_div_fixup_f32 v{n}, v{a}, v{D}, v{n}")
    A(f"v_cvt_pk_bf16_f32 v{N}, v{N}, v{N+1}")
    ev(6)
    A(f"buffer_store_dword v{N}, v{vQA}, {sQ}, {sQO} offen {opol}")
    A("L_fin:")
    if stamp:
        A("s_waitcnt vmcnt(0)")
        A("s_memrealtime s[52:53]"); A("s_memtime s[58:59]")
        A("s_getreg_b32 s54, hwreg(HW_REG_XCC_ID)")
        A("s_getreg_b32 s55, hwreg(HW_REG_HW_ID)")
        A("s_waitcnt lgkmcnt(0)")
        A("s_add_u32 s28, s16, 0x20000000"); A("s_addc_u32 s29, s17, 0"); A("s_mov_b32 s30, 0x1000000")
        A(f"s_mul_i32 s18, s2, {W}"); A(f"s_add_u32 s18, s18, {sW}"); A("s_lshl_b32 s18, s18, 6")
        for i in range(16): A(f"v_mov_b32 v{AC+i}, s{48+i}")
        A(f"v_mov_b32 v{U}, 0")
        for i in range(4): A(f"buffer_store_dwordx4 {vr(AC+4*i,4)}, v{U}, {sX}, s18 offen offset:{16*i}")
        if trace:
            A(f"v_writelane_b32 v{TR}, s50, 62"); A(f"v_writelane_b32 v{TR}, s54, 61"); A(f"v_writelane_b32 v{TR}, s55, 60"); A(f"v_writelane_b32 v{TR}, {sN}, 59")
            for i in range(8): A(f"v_writelane_b32 v{TR}, s{80+2*i}, {48+i}")
            A(f"v_writelane_b32 v{TR}, s100, 56")
            A(f"v_writelane_b32 v{TR}, s98, 44"); A(f"v_writelane_b32 v{TR}, s100, 45"); A(f"v_writelane_b32 v{TR}, s60, 46"); A(f"v_writelane_b32 v{TR}, s62, 47")
            A(f"v_writelane_b32 v{TR}, s52, 57"); A(f"v_writelane_b32 v{TR}, {sTK}, 58")
            A("s_lshl_b32 s18, s18, 2"); A("s_add_u32 s18, s18, 0x100000"); A(f"v_lshlrev_b32 v{U}, 2, v{vL}")
            A(f"buffer_store_dword v{TR}, v{U}, {sX}, s18 offen")
    A("L_end:"); A("s_endpgm")
    acc=min(256,(nv+3)//4*4)
    A('.section .rodata,"a"'); A(".p2align 6"); A(f".amdhsa_kernel {KN}")
    A(f"  .amdhsa_next_free_vgpr {nv}"); A(f"  .amdhsa_next_free_sgpr {102 if (trace or rt) else 80}"); A(f"  .amdhsa_accum_offset {acc}")
    A("  .amdhsa_group_segment_fixed_size 0"); A("  .amdhsa_kernarg_size 56"); A("  .amdhsa_user_sgpr_count 2"); A("  .amdhsa_user_sgpr_kernarg_segment_ptr 1"); A("  .amdhsa_system_sgpr_workgroup_id_x 1")
    A("  .amdhsa_float_denorm_mode_32 3")
    A(".end_amdhsa_kernel")
    return "\n".join(o)+"\n"
if __name__=="__main__":
    from build import build
    import os
    os.makedirs("k",exist_ok=True)
    names=[]
    for spec in sys.argv[1:]:
        kw={}
        for p in spec.split(","):
            k,v=p.split("=")
            kw[k]= v if k in ("LV","pat","RK") else int(v) if v.isdigit() else v.replace("+"," ").replace("none","")
        name="k/g6_"+spec.replace("=","").replace(",","_").replace("+","")
        open(name+".s","w").write(gen(**kw))
        build(name+".s")
        names.append(name)
    print(" ".join(names))
```

```python
import sys, struct
KN="standalone__linear_kernel_rfa__decode_kernel"
def f2u(x): return struct.unpack("<I",struct.pack("<f",x))[0]
SCALE=0x3e9837f0
LOG2E=f2u(1.4426950408889634)
EPSBF=0x35860000
HDR="""; RFA (FAVOR+) linear-attention decode, B=4 H=32 Sk=8192 D=128 M=16, bf16.
"""
def gen(LV="211", pol="nt", stamp=0, trace=0, spincap=1000000, opol="", kpos=2, cst=256,
        pat="abch.kde.ljigfm.0321465.4.2.36.0", mrot=0, wgc=1, hand=1, pro="okv", psleep=0, ldsonly=0, baronly=0, barpos=0, rt=0, fin=0, early=0, dbg=0, RK=None, nb=0, fake=0, pad=0, poll=1, idp=0, delay=0, prot=0, onlyadd=0, fl1=0, j0=4, warm=0, opl='sc1', late=0, oml=0, first=-1, kpol=None, vpol=None, pre=0):
    W=4; NWG=256; MEM=8
    kpol = pol if kpol is None else kpol
    vpol = pol if vpol is None else vpol
    LV=[int(c,16) for c in str(LV)] if str(LV)!="0" else []
    assert all(z<7 for z in LV)
    ST=64-sum(LV)-fin
    if RK is not None:
        RK=[int(c,16) for c in str(RK)]; assert len(RK)==8 and (sum(RK)+nb)%8==0 and not wgc and not early
        ST=64-(sum(RK)+nb)//8-fin; LV=[]
    NL=len(LV)
    f=pat.split(".")
    ib=[8+ord(c)-97 for c in f[0]]; mb=[8+ord(c)-97 for c in f[1]]; tb=[8+ord(c)-97 for c in f[2]]
    hb=[int(c) for c in f[3]]; hx,hxs,hr,hrs=map(int,f[4:8])
    assert sorted(ib+mb+tb)==list(range(8,21)) and sorted(hb)==list(range(7))
    def scat(x,bits): return sum(((x>>k)&1)<<p for k,p in enumerate(bits))
    tstart=[]; acc_=ST
    for z in LV: tstart.append(acc_); acc_+=z
    CTR=0x200000
    o=[]; A=o.append
    def C(t): A("; "+t)
    A(HDR.rstrip())
    A(f"; @launch grid=({NWG},1,1) block=({W*64},1,1) lds={16384 if oml else 256 if (wgc or ldsonly) else 0}")
    A('.amdgcn_target "amdgcn-amd-amdhsa--gfx950"')
    A(".text"); A(f".globl {KN}"); A(".p2align 8"); A(f".type {KN},@function"); A(f"{KN}:")
    vKA,vVA=1,2
    vMA,vMB=3,4
    vL=5
    CN=6; ON=8; PH=10; BT=12
    P=16; G=20; PQ=24; Z=28
    T=32; U=40; OM=48; AC=64
    KB=96; VB=112; QB=128
    vQA=144; vPA=145; vV0=146; vTAB=150; vCA=151; OLD=152; KB2=168; TR=KB2+32*fin
    nv=TR+1 if trace else (TR if fin else 166)
    sK,sV,sX,sQ="s[20:23]","s[24:27]","s[28:31]","s[44:47]"
    sOFF="s32"; sT="s33"; sHI="s34"; sL2E="s35"; sEPS="s36"; sPL="s37"; sPHI="s38"; sW="s3"
    sSC="s[40:41]"
    sR="s42"; sS="s43"; sTK="s64"; sFL="s65"; sH="s19"; sM="s66"; sCT="s[68:69]"; sFA="s[70:71]"; sFB="s67"; sN="s72"
    sLH="s78"; sHX="s79"; sFM="s39"; sSL="s73"; sQO="s74"; sCAP="s75"; sAR="s[76:77]"
    def vr(a,n): return f"v[{a}:{a+n-1}]"
    def ev(i):
        if trace: A(f"s_memrealtime s[{80+2*i}:{81+2*i}]")
    A(f"s_cmp_ge_u32 s2, {NWG}"); A("s_cbranch_scc1 L_end")
    if idp==1:
        A("s_and_b32 s18, s2, 7"); A("s_lshl_b32 s18, s18, 3"); A("s_bfe_u32 s19, s2, 0x30003"); A("s_or_b32 s18, s18, s19"); A("s_and_b32 s2, s2, 0xc0"); A("s_or_b32 s2, s2, s18")
    if idp==2:
        A("s_sub_u32 s2, 255, s2")
    if delay:
        A("s_and_b32 s18, s2, 7"); A(f"s_cmp_lg_u32 s18, {delay-1}"); A("s_cbranch_scc1 L_nodelay")
        A("s_mov_b32 s18, 40"); A("L_dly:"); A("s_sleep 127"); A("s_sub_u32 s18, s18, 1"); A("s_cbranch_scc0 L_dly"); A("L_nodelay:")
    A("s_load_dwordx8 s[4:11], s[0:1], 0")
    A("s_load_dwordx4 s[12:15], s[0:1], 32")
    A("s_load_dwordx2 s[16:17], s[0:1], 48")
    if stamp: A("s_memrealtime s[48:49]"); A("s_memtime s[56:57]")
    if rt:
        assert not trace and not stamp
        A("s_waitcnt lgkmcnt(0)")
        A("s_load_dwordx16 s[80:95], s[10:11], 4096")
        A("s_load_dwordx16 s[48:63], s[10:11], 4160")
        A("s_waitcnt lgkmcnt(0)")
        ib=["s80","s81","s82","s83"]; mb=["s84","s85","s86"]; tb=[f"s{87+k}" for k in range(6)]; hb=[f"s{52+k}" for k in range(7)]
        hx,hxs,hr,hrs,mrot="s94","s48","s95","s50","s93"
    A(f"v_lshrrev_b32 v{vKA}, 6, v0"); A(f"v_and_b32 v{vL}, 63, v0")
    A(f"v_readfirstlane_b32 {sW}, v{vKA}")
    if wgc:
        C("clear the workgroup's ticket mailbox")
        A(f"v_lshlrev_b32 v{U}, 2, v{vL}"); A(f"v_mov_b32 v{vCA}, 0"); A(f"ds_write_b32 v{U}, v{vCA}")
    C("per-lane byte offsets inside a 16-key tile")
    A(f"v_bfe_u32 v{U+2}, v0, 4, 2")
    A(f"v_lshlrev_b32 v{vKA}, 4, v{U+2}")
    def vscat(dst, src, pairs):
        k=0
        while k<len(pairs):
            lb,pos=pairs[k]; n=1
            while not rt and k+n<len(pairs) and pairs[k+n]==(lb+n,pos+n): n+=1
            A(f"v_bfe_u32 v{U+4}, v{src}, {lb}, {n}"); A(f"v_lshl_add_u32 v{dst}, v{U+4}, {pos}, v{dst}")
            k+=n
    vscat(vKA,0,[(2,ib[0]),(3,ib[1]),(0,ib[2]),(1,ib[3])])
    A(f"v_lshlrev_b32 v{vVA}, 4, v{vL}")
    if (ib[0],ib[1])!=(8,9):
        A(f"v_and_b32 v{vVA}, 15, v0"); A(f"v_lshlrev_b32 v{vVA}, 4, v{vVA}"); vscat(vVA,0,[(4,ib[0]),(5,ib[1])])
    vreg={}; voff={}
    if rt:
        A(f"v_lshl_add_u32 v{vV0+1}, 1, {ib[2]}, v{vVA}"); A(f"v_lshl_add_u32 v{vV0+2}, 1, {ib[3]}, v{vVA}"); A(f"v_lshl_add_u32 v{vV0+3}, 1, {ib[3]}, v{vV0+1}")
        vreg={0:vVA,1:vV0+1,2:vV0+2,3:vV0+3}; voff={0:0,1:0,2:0,3:0}
    for e in range(4):
        if rt: break
        x=scat(e,ib[2:]); lo=x&0xfff; hi=x-lo
        if hi==0: vreg[e]=vVA
        else:
            prev=[g for g in range(e) if (scat(g,ib[2:])&~0xfff)==hi]
            if prev: vreg[e]=vreg[prev[0]]
            else: vreg[e]=vV0+e; A(f"v_add_u32 v{vV0+e}, {hi:#x}, v{vVA}")
        voff[e]=lo
    A(f"v_and_b32 v{U+3}, 15, v0"); A(f"v_lshlrev_b32 v{vQA}, 4, v{U+2}"); A(f"v_lshl_add_u32 v{U+3}, v{U+3}, 8, v{vQA}")
    if oml: A(f"v_lshlrev_b32 v{U+5}, 4, v{vL}")
    C("logical head = 4*group + wave; physical head, share (member) and trip table")
    A(f"s_lshr_b32 {sLH}, s2, 3"); A(f"s_lshl2_add_u32 {sLH}, {sLH}, {sW}")
    def sperm(dst, src, pos):
        k=0; first=True
        while k<len(pos):
            n=1
            while not rt and k+n<len(pos) and pos[k+n]==pos[k]+n: n+=1
            t_=dst if first else "s18"
            A(f"s_bfe_u32 {t_}, {src}, {k|(n<<16):#x}")
            if pos[k]: A(f"s_lshl_b32 {t_}, {t_}, {pos[k]}")
            if not first: A(f"s_or_b32 {dst}, {dst}, s18")
            first=False; k+=n
    sperm(sH,sLH,hb)
    A(f"s_lshr_b32 {sHX}, {sLH}, {hxs}"); A(f"s_mul_i32 {sHX}, {sHX}, {hx}")
    if mrot: A(f"s_add_u32 {sHX}, {sHX}, {mrot}")
    A(f"s_add_u32 {sTK}, {sHX}, s2")
    sperm(sT,sTK,mb)
    if hr:
        A(f"s_lshr_b32 s18, {sLH}, {hrs}"); A(f"s_mul_i32 s18, s18, {hr}"); A(f"v_xor_b32 v{U+1}, s18, v0")
    else: A(f"v_mov_b32 v{U+1}, v0")
    A(f"v_mov_b32 v{vTAB}, 0")
    vscat(vTAB,U+1,[(k,tb[k]) for k in range(6)])
    A(f"s_lshl_b32 s18, {sH}, 21")
    A(f"v_readlane_b32 {sOFF}, v{vTAB}, 0")
    A("s_mov_b32 s22, 0x200000"); A("s_mov_b32 s23, 0x00020000"); A("s_mov_b32 s26, 0x200000"); A("s_mov_b32 s27, 0x00020000")
    A("s_mov_b32 s30, 4096"); A("s_mov_b32 s31, 0x00020000")
    A(f"s_or_b32 {sOFF}, {sOFF}, {sT}")
    if trace==3: A("s_memrealtime s[60:61]")
    A("s_waitcnt lgkmcnt(0)"); ev(7)
    if (wgc and barpos==0) or baronly: A("s_barrier")
    A("s_mov_b32 s28, s10"); A("s_mov_b32 s29, s11")
    A("s_add_u32 s20, s6, s18"); A("s_addc_u32 s21, s7, 0")
    A("s_add_u32 s24, s8, s18"); A("s_addc_u32 s25, s9, 0")
    def loadK(j,KB=KB):
        if fake: A(f"buffer_load_dwordx4 {vr(KB+4*j,4)}, v{vreg[j]}, {sK}, {sOFF} offen offset:{voff[j]} {pol}")
        else: A(f"buffer_load_dwordx4 {vr(KB+4*j,4)}, v{vKA}, {sK}, {sOFF} offen offset:{64*j} {kpol}")
    def loadV(e,VB=VB): A(f"buffer_load_dwordx4 {vr(VB+4*e,4)}, v{vreg[e]}, {sV}, {sOFF} offen offset:{voff[e]} {vpol}")
    for n,c in enumerate(pro):
        for j in range(4):
            if c=='o' and oml: A(f"buffer_load_dwordx4 {vr(QB+4*j,4)}, v{U+5}, {sX}, 0 offen offset:{1024*j}")
            elif c=='o': A(f"buffer_load_dwordx4 {vr(OM+4*j,4)}, v{U+3}, {sX}, 0 offen offset:{64*j}")
            if c=='k': loadK(j)
            if c=='v': loadV(j)
        if trace and n<2: A(f"s_memrealtime s[{98+2*n}:{99+2*n}]")
    ev(8)
    if prot==1: A(f"s_lshr_b32 {sM}, s2, 3"); A(f"s_add_u32 {sM}, {sM}, s2"); A(f"s_and_b32 {sM}, {sM}, 7")
    elif prot==2: A(f"s_add_u32 {sM}, {sLH}, s2"); A(f"s_and_b32 {sM}, {sM}, 7")
    elif prot>=8: A(f"s_add_u32 {sM}, s2, {prot-8}"); A(f"s_and_b32 {sM}, {sM}, 7")
    else: A(f"s_and_b32 {sM}, s2, 7")
    A("s_mov_b32 s28, s16"); A("s_mov_b32 s29, s17"); A(f"s_mov_b32 s30, {CTR+128*cst if onlyadd else 128*4096}")
    A("s_mov_b32 s44, s4"); A("s_mov_b32 s45, s5"); A("s_mov_b32 s46, 32768"); A("s_mov_b32 s47, 0x00020000")
    A(f"s_lshl_b32 {sQO}, {sH}, 8")
    A(f"s_lshl_b32 {sSL}, {sLH}, 12")
    A(f"s_and_b32 s18, {sLH}, {0x7c if wgc else 0x7f}"); A(f"s_mul_i32 s18, s18, {cst}"); A(f"s_add_u32 s18, s18, {CTR}"); A("s_add_u32 s68, s16, s18"); A("s_addc_u32 s69, s17, 0")
    if onlyadd: assert hand and not wgc; A("s_mov_b32 s9, s18"); A(f"v_mov_b32 v{vCA}, 0")
    if not hand:
        A(f"s_mul_i32 s18, {sLH}, {cst}"); A(f"s_add_u32 s18, s18, {CTR}"); A("s_add_u32 s76, s16, s18"); A("s_addc_u32 s77, s17, 0")
    A(f"s_lshr_b32 s18, {sLH}, 5"); A("s_lshl_b32 s18, s18, 2"); A("s_add_u32 s70, s14, s18"); A("s_addc_u32 s71, s15, 0")
    A(f"s_lshl_b32 {sFB}, 1, {sLH}")
    if wgc: A(f"s_and_b32 s18, {sLH}, 28"); A(f"s_lshl_b32 {sFM}, 1, s18"); A(f"s_or_b32 {sFM}, {sFM}, {sFB}")
    else: A(f"s_mov_b32 {sFM}, {sFB}")
    if warm&1:
        C("touch the hand-off page and q early through the scalar path (address translation only)")
        A(f"s_load_dword {sFL}, s[16:17], {sSL}")
    if warm&2:
        A(f"s_load_dword {sTK}, s[44:45], {sQO}")
    A(f"s_mov_b32 {sHI}, 0xffff0000"); A(f"s_mov_b32 {sL2E}, {LOG2E:#x}"); A(f"s_mov_b32 {sEPS}, {EPSBF:#x}")
    A(f"s_mov_b32 {sPL}, 0x05040100"); A(f"s_mov_b32 {sPHI}, 0x07060302")
    A(f"s_mov_b32 s40, {SCALE:#x}"); A(f"s_mov_b32 s41, {SCALE:#x}")
    A(f"s_mov_b32 {sCAP}, {spincap}")
    if pre: A(f"s_mov_b32 s77, {ST-j0+1}")
    if dbg: A("s_mov_b32 s4, 0")
    if RK is not None: A("s_mov_b32 s4, 0"); A("s_mov_b32 s5, 0"); A("s_mov_b32 s8, 0")
    A(f"v_mov_b32 v{CN}, 0xbf00bf00"); A(f"v_mov_b32 v{CN+1}, 0xbf00bf00")
    A(f"v_mov_b32 v{ON}, 0x3f803f80"); A(f"v_mov_b32 v{ON+1}, 0x3f803f80")
    C("masks that keep the diagonal of the 16x16 Gram tile")
    A(f"v_and_b32 v{U}, 15, v0"); A(f"v_lshlrev_b32 v{U+1}, 2, v{U+2}"); A(f"v_sub_u32 v{U}, v{U}, v{U+1}")
    A(f"v_mov_b32 v{U+1}, 0xffff"); A(f"v_mov_b32 v{U+2}, {sHI}")
    A(f"v_mov_b32 v{vMA}, 0"); A(f"v_mov_b32 v{vMB}, 0")
    for r,(dst,src) in enumerate([(vMA,U+1),(vMA,U+2),(vMB,U+1),(vMB,U+2)]):
        A(f"v_cmp_eq_u32 vcc, {r}, v{U}"); A("s_nop 1"); A(f"v_cndmask_b32 v{dst}, v{dst}, v{src}, vcc")
    for i in range(32): A(f"v_mov_b32 v{AC+i}, 0")
    for i in range(4): A(f"v_mov_b32 v{Z+i}, 0")
    A(f"v_lshlrev_b32 v{vPA}, 3, v{vL}")
    A(f"v_mov_b32 v0, 0x3e800000")
    if stamp and trace!=3: A("s_memrealtime s[60:61]")
    if stamp: A("s_memrealtime s[62:63]")
    if oml:
        A(f"s_lshl_b32 s18, {sW}, 12"); A(f"v_add_u32 v{U+5}, s18, v{U+5}"); A(f"v_add_u32 v{U+3}, s18, v{U+3}")
        base={'okv':8,'kov':4,'kvo':0}[pro]
        for j in range(4):
            A(f"s_waitcnt vmcnt({base+3-j})"); A(f"ds_write_b128 v{U+5}, {vr(QB+4*j,4)} offset:{1024*j}")
        A("s_waitcnt lgkmcnt(0)")
        for j in range(4): A(f"ds_read_b128 {vr(OM+4*j,4)}, v{U+3} offset:{64*j}")
        A("s_waitcnt lgkmcnt(0)")
    elif pro[-1]=='o': A("s_waitcnt vmcnt(0)")
    elif pro[1]=='o': A("s_waitcnt vmcnt(4)")
    def scale4(src, dst, mid=None):
        for q in range(4):
            A(f"v_lshlrev_b32 v{U+2*q}, 16, v{src+q}"); A(f"v_and_b32 v{U+2*q+1}, {sHI}, v{src+q}")
        if mid: mid()
        for q in range(4): A(f"v_pk_mul_f32 {vr(U+2*q,2)}, {vr(U+2*q,2)}, {sSC}")
        for q in range(4): A(f"v_cvt_pk_bf16_f32 v{dst+q}, v{U+2*q}, v{U+2*q+1}")
    def rnd4(R):
        A(f"v_cvt_pk_bf16_f32 v{U}, v{R}, v{R+1}"); A(f"v_cvt_pk_bf16_f32 v{U+1}, v{R+2}, v{R+3}")
        A(f"v_lshlrev_b32 v{R}, 16, v{U}"); A(f"v_and_b32 v{R+1}, {sHI}, v{U}")
        A(f"v_lshlrev_b32 v{R+2}, 16, v{U+1}"); A(f"v_and_b32 v{R+3}, {sHI}, v{U+1}")
    def phi_tail(R):
        rnd4(R)
        for r in range(4): A(f"v_mul_f32 v{R+r}, {sL2E}, v{R+r}")
        for r in range(4): A(f"v_exp_f32 v{R+r}, v{R+r}")
        A("s_nop 0")
        rnd4(R)
        for r in range(4): A(f"v_fmaak_f32 v{R+r}, v{R+r}, v0, {EPSBF:#x}")
    def tile(last, KB=KB, VB=VB, extra=0, kpos=kpos):
        C("ks = bf16(k*scale); G += ks.ks^T; P += ks.omega^T")
        if early==1 and not last and NL:
            A(f"s_cmp_lg_u32 {sR}, 0"); A(f"s_cbranch_scc1 L_nc"); A(f"s_mov_b32 {sTK}, 1"); A(f"s_atomic_add {sTK}, {sCT}, 0 glc"); A("L_nc:")
        for j in range(4):
            A(f"s_waitcnt vmcnt({extra+(7-j if (last or kpos) else 7)})")
            t=T+4*(j%2)
            scale4(KB+4*j, t, None if (last or kpos) else (lambda: loadK(j)))
            A("s_nop 1")
            c = "0" if j==0 else vr(G,4)
            A(f"v_mfma_f32_16x16x32_bf16 {vr(G,4)}, {vr(t,4)}, {vr(t,4)}, {c}")
            c = "0" if j==0 else vr(P,4)
            A(f"v_mfma_f32_16x16x32_bf16 {vr(P,4)}, {vr(t,4)}, {vr(OM+4*j,4)}, {c}")
        if kpos==1 and not last:
            for j in range(4): loadK(j)
            A("s_nop 2")
        else: A("s_nop 6")
        C("x = bf16(P) - 0.5*bf16(diag G); phi = bf16(bf16(exp(bf16(x)))/4 + eps)")
        A(f"v_cvt_pk_bf16_f32 v{PH}, v{G}, v{G+1}"); A(f"v_cvt_pk_bf16_f32 v{PH+1}, v{G+2}, v{G+3}")
        A(f"v_and_b32 v{PH}, v{PH}, v{vMA}"); A(f"v_and_b32 v{PH+1}, v{PH+1}, v{vMB}")
        rnd4(P)
        A("s_nop 1")
        A(f"v_mfma_f32_16x16x16_bf16 {vr(P,4)}, {vr(PH,2)}, {vr(CN,2)}, {vr(P,4)}")
        A("s_nop 7")
        phi_tail(P)
        A(f"v_cvt_pk_bf16_f32 v{PH}, v{P}, v{P+1}"); A(f"v_cvt_pk_bf16_f32 v{PH+1}, v{P+2}, v{P+3}")
        if kpos==2 and not last:
            for j in range(4): loadK(j)
        if early==2 and not last and NL:
            A(f"s_cmp_lg_u32 {sR}, 0"); A(f"s_cbranch_scc1 L_nc"); A(f"s_mov_b32 {sTK}, 1"); A(f"s_atomic_add {sTK}, {sCT}, 0 glc"); A("L_nc:")
        A(f"s_waitcnt vmcnt({extra+(0 if (last or kpos>=3) else 4)})")
        if kpos==3 and not last:
            for j in range(4): loadK(j)
        V=VB
        def perm(jj):
            bt=BT+2*(jj%2); q=jj>>1; sel=sPHI if jj&1 else sPL
            A(f"v_perm_b32 v{bt}, v{V+4+q}, v{V+q}, {sel}")
            A(f"v_perm_b32 v{bt+1}, v{V+12+q}, v{V+8+q}, {sel}")
        C("z += phi^T.1 ; kv += phi^T.V")
        perm(0)
        A(f"v_mfma_f32_16x16x16_bf16 {vr(Z,4)}, {vr(PH,2)}, {vr(ON,2)}, {vr(Z,4)}")
        for jj in range(8):
            if jj<7: perm(jj+1)
            elif not last:
                for i in range(pad): A("s_nop 15")
                if pre:
                    A(f"s_cmp_eq_u32 {sR}, s77"); A("s_cbranch_scc1 L_pre"); A("L_preb:")
                if kpos==4:
                    for j in range(4): loadK(j)
                for e in range(4): loadV(e)
            else: A("s_nop 0")
            bt=BT+2*(jj%2)
            A(f"v_mfma_f32_16x16x16_bf16 {vr(AC+4*jj,4)}, {vr(PH,2)}, {vr(bt,2)}, {vr(AC+4*jj,4)}")
    if trace:
        A(f"s_mov_b32 {sN}, 0"); A(f"v_mov_b32 v{TR}, 0"); A("s_waitcnt lgkmcnt(0)"); A(f"v_writelane_b32 v{TR}, s48, 63")
    C(f"{sS} = trip index of the tile loaded in this trip, {sR} = tiles left in the chunk after it, {sT} = share bits")
    if first>=0:
        assert not early and not trace
        C("first trip: the memory pipe is still filling, so the next K goes out as soon as its registers are free")
        A(f"v_readlane_b32 {sOFF}, v{vTAB}, 1")
        A(f"s_mov_b32 {sS}, 2"); A(f"s_mov_b32 {sR}, {ST-3}")
        A(f"s_or_b32 {sOFF}, {sOFF}, {sT}")
        tile(False, kpos=first)
    else:
        A(f"s_mov_b32 {sS}, 1"); A(f"s_mov_b32 {sR}, {ST-2}")
    A(".p2align 3")
    A("L_loop:")
    if trace: A("s_memrealtime s[96:97]")
    A(f"v_readlane_b32 {sOFF}, v{vTAB}, {sS}")
    A(f"s_add_u32 {sS}, {sS}, 1")
    A(f"s_or_b32 {sOFF}, {sOFF}, {sT}")
    tile(False)
    if trace:
        A("s_waitcnt lgkmcnt(0)"); A(f"s_lshr_b32 s18, {sN}, 1"); A("s_min_u32 s18, s18, 35"); A("s_mov_b32 m0, s18"); A("s_nop 0"); A(f"v_writelane_b32 v{TR}, s96, m0"); A(f"s_add_u32 {sN}, {sN}, 1")
    A(f"s_sub_u32 {sR}, {sR}, 1")
    A("s_cbranch_scc1 L_next")
    C("one-off jobs run in the idle window between two static trips")
    J0=ST-j0
    if pre:
        assert kpos==4 and hand and not late and not wgc and first<0
        A(f"s_cmp_eq_u32 {sR}, {J0-1}"); A("s_cbranch_scc1 L_job0b")
        A(f"s_cmp_eq_u32 {sR}, 8"); A("s_cbranch_scc1 L_job2")
        A("s_branch L_loop")
        A("L_pre:")
        C("side loads go out just ahead of a tile's loads, so they cost no extra wait")
        A("s_cmp_eq_u32 s77, 10"); A("s_cbranch_scc0 L_pre0")
        C("fetch q")
        for j in range(4): A(f"buffer_load_dwordx4 {vr(QB+4*j,4)}, v{vQA}, {sQ}, {sQO} offen offset:{64*j}")
        A("s_mov_b32 s77, -1")
        A("s_branch L_preb")
        A("L_pre0:")
        A("s_mov_b32 s77, 10")
        C("read what the hand-off slots hold now; a word is new once its lowest bit has flipped")
        A(f"s_cmp_eq_u32 {sM}, 0"); A("s_cbranch_scc1 L_job0p")
        A(f"s_lshl_b32 s18, {sM}, 9"); A(f"s_add_u32 {sSL}, {sSL}, s18")
        A(f"buffer_load_dwordx2 {vr(OLD,2)}, v{vPA}, {sX}, {sSL} offen {opl}")
        A("s_branch L_preb")
        A("L_job0p:")
        for s in range(1,8): A(f"buffer_load_dwordx2 {vr(OLD+2*s-2,2)}, v{vPA}, {sX}, {sSL} offen offset:{512*s} sc1")
        if onlyadd:
            C("clear the head's ticket counter (complete by the next trip's V wait)")
            A("s_mov_b64 exec, 1")
            A(f"buffer_store_dword v{vCA}, v{vCA}, {sX}, s9 offen sc1")
            A("s_mov_b64 exec, -1")
            A("s_nop 3")
        A("s_branch L_preb")
    else:
        A(f"s_sub_u32 s18, {sR}, {J0-1}"); A("s_cmp_lt_u32 s18, 2"); A("s_cbranch_scc1 L_job0")
        A(f"s_sub_u32 s18, {sR}, 8"); A("s_cmp_gt_u32 s18, 1"); A("s_cbranch_scc1 L_loop")
        A(f"s_cmp_eq_u32 s18, 0"); A("s_cbranch_scc1 L_job2")
        C("job1: fetch q")
        if fl1: A(f"s_load_dword {sFL}, {sFA}, 0")
        for j in range(4): A(f"buffer_load_dwordx4 {vr(QB+4*j,4)}, v{vQA}, {sQ}, {sQO} offen offset:{64*j}")
        A("s_branch L_loop")
        A("L_job0:")
        if warm: A("s_waitcnt lgkmcnt(0)")
        A(f"s_cmp_eq_u32 s18, 0"); A("s_cbranch_scc1 L_job0b")
        if hand:
            C("job0a: read what the hand-off slots hold now; a word is new once its lowest bit has flipped")
            if late:
                A(f"s_cmp_lg_u32 {sM}, 0"); A("s_cbranch_scc1 L_loop")
            else:
                A(f"s_cmp_eq_u32 {sM}, 0"); A("s_cbranch_scc1 L_job0p")
                A(f"s_lshl_b32 s18, {sM}, 9"); A(f"s_add_u32 {sSL}, {sSL}, s18")
                A(f"buffer_load_dwordx2 {vr(OLD,2)}, v{vPA}, {sX}, {sSL} offen {opl}")
                A("s_branch L_loop")
                A("L_job0p:")
            for s in range(1,8): A(f"buffer_load_dwordx2 {vr(OLD+2*s-2,2)}, v{vPA}, {sX}, {sSL} offen offset:{512*s} sc1")
            if onlyadd:
                C("clear the head's ticket counter (complete by the next trip's V wait)")
                A("s_mov_b64 exec, 1")
                A(f"buffer_store_dword v{vCA}, v{vCA}, {sX}, s9 offen sc1")
                A("s_mov_b64 exec, -1")
        A("s_branch L_loop")
    A("L_job0b:")
    C("job0b: member 0 clears the ticket counter, then raises its ready bit")
    if hand:
        if late:
            A(f"s_cmp_lg_u32 {sM}, 0"); A("s_cbranch_scc1 L_loop")
        else:
            A(f"s_cmp_eq_u32 {sM}, 0"); A("s_cbranch_scc1 L_job0q")
            A(f"v_not_b32 v{OLD}, v{OLD}"); A(f"v_not_b32 v{OLD+1}, v{OLD+1}"); A(f"v_and_b32 v{OLD}, 1, v{OLD}")
            A("s_branch L_loop")
            A("L_job0q:")
        if wgc: A(f"s_cmp_lg_u32 {sW}, 0"); A("s_cbranch_scc1 L_job0r")
        if not onlyadd:
            A(f"s_mov_b32 {sTK}, 0"); A(f"s_atomic_swap {sTK}, {sCT}, 0 glc")
            A("s_waitcnt lgkmcnt(0)")
        A("L_job0r:")
    else:
        A(f"s_cmp_lg_u32 {sM}, 0"); A("s_cbranch_scc1 L_loop")
        A("s_mov_b64 s[64:65], 0")
        A(f"s_atomic_swap_x2 s[64:65], {sAR}, 0 glc")
        A("s_waitcnt lgkmcnt(0)")
    if onlyadd==1:
        assert not stamp and not rt
        A("s_mov_b32 s48, s14"); A("s_mov_b32 s49, s15"); A("s_mov_b32 s50, 256"); A("s_mov_b32 s51, 0x00020000")
        A(f"s_lshr_b32 s18, {sLH}, 5"); A("s_lshl_b32 s18, s18, 2")
        A("s_mov_b64 exec, 1")
        A(f"v_mov_b32 v{vV0}, {sFB}")
        A(f"buffer_atomic_or v{vV0}, v{vCA}, s[48:51], s18 offen")
        A("s_mov_b64 exec, -1")
    else: A(f"s_atomic_or {sFB}, {sFA}, 0")
    A("s_branch L_loop")
    A("L_job2:")
    C("job2: phi_q (A=omega, B=qs: rows are m) and the ready check")
    if not fl1: A(f"s_load_dword {sFL}, {sFA}, 0")
    for j in range(4):
        scale4(QB+4*j, T+4*(j%2))
        A("s_nop 1")
        c = "0" if j==0 else vr(PQ,4)
        A(f"v_mfma_f32_16x16x32_bf16 {vr(PQ,4)}, {vr(OM+4*j,4)}, {vr(T+4*(j%2),4)}, {c}")
        c = "0" if j==0 else vr(G,4)
        A(f"v_mfma_f32_16x16x32_bf16 {vr(G,4)}, {vr(T+4*(j%2),4)}, {vr(T+4*(j%2),4)}, {c}")
    A("s_nop 7")
    rnd4(PQ); rnd4(G)
    for r in range(4): A(f"v_fma_f32 v{PQ+r}, v{G+r}, -0.5, v{PQ+r}")
    phi_tail(PQ); rnd4(PQ)
    A("s_mov_b32 s44, s12"); A("s_mov_b32 s45, s13")
    C("output lane offset")
    A(f"v_and_b32 v{vQA}, 15, v{vL}"); A(f"v_lshrrev_b32 v{U}, 4, v{vL}")
    A(f"v_lshlrev_b32 v{vQA}, 4, v{vQA}"); A(f"v_lshl_add_u32 v{vQA}, v{U}, 2, v{vQA}")
    A("s_waitcnt lgkmcnt(0)")
    if wgc and barpos==1: A("s_barrier")
    A("L_chk:")
    A(f"s_and_b32 {sFL}, {sFL}, {sFM}"); A(f"s_cmp_eq_u32 {sFL}, {sFM}"); A("s_cbranch_scc1 L_loop")
    A("s_sleep 8")
    A(f"s_mov_b32 {sFL}, 0"); A(f"s_atomic_{'add' if onlyadd else 'or'} {sFL}, {sFA}, 0 glc"); A("s_waitcnt lgkmcnt(0)")
    A(f"s_sub_u32 {sCAP}, {sCAP}, 1"); A("s_cbranch_scc0 L_chk")
    A("s_branch L_end")
    A("L_next:")
    if RK is not None:
        st=[sum(RK[:t]) for t in range(8)]
        AT=sum(a<<(8*t) for t,a in enumerate(st)); SZ=sum(z<<(4*t) for t,z in enumerate(RK))
        C("s4 = next leftover tile of the drawn run, s5 = tiles left in it, s8 = draws so far")
        A("L_next2:")
        A("s_sub_u32 s5, s5, 1"); A("s_cbranch_scc0 L_run")
        if not nb: A("s_cmp_lg_u32 s8, 0"); A("s_cbranch_scc1 L_last"); A("s_mov_b32 s8, 1")
        A(f"s_mov_b32 {sTK}, 1"); A(f"s_atomic_add {sTK}, {sCT}, 0 glc")
        A(f"s_mov_b32 s6, {AT&0xffffffff:#x}"); A(f"s_mov_b32 s7, {AT>>32:#x}")
        A("s_waitcnt lgkmcnt(0)")
        if nb:
            A(f"s_cmp_ge_u32 {sTK}, {8+nb}"); A("s_cbranch_scc1 L_last")
            A(f"s_add_u32 s4, {sTK}, {sum(RK)-8}"); A("s_mov_b32 s5, 0")
            A(f"s_cmp_ge_u32 {sTK}, 8"); A("s_cbranch_scc1 L_run")
        A(f"s_lshl_b32 s18, {sTK}, 3"); A("s_lshr_b64 s[6:7], s[6:7], s18"); A("s_and_b32 s4, s6, 0xff")
        A(f"s_lshl_b32 s18, {sTK}, 2"); A(f"s_lshr_b32 s5, {SZ:#x}, s18"); A("s_and_b32 s5, s5, 15")
        A("s_branch L_next2")
        A("L_run:")
        A(f"s_add_u32 {sFL}, s4, {sHX}")
        sperm(sT, sFL, mb)
        A(f"s_lshr_b32 {sS}, s4, 3"); A(f"s_add_u32 {sS}, {sS}, {ST}"); A(f"s_mov_b32 {sR}, 0")
        A("s_add_u32 s4, s4, 1")
        A("s_branch L_loop")
    if NL:
        if wgc:
            C("first wave of the workgroup to get here draws the ticket, the others read it from LDS")
            A("s_mov_b64 exec, 1")
            A(f"v_mov_b32 v{U}, 1")
            A(f"ds_max_rtn_u32 v{U}, v{vCA}, v{U}")
            A("L_mail:")
            A("s_waitcnt lgkmcnt(0)")
            A(f"v_readfirstlane_b32 {sTK}, v{U}")
            A(f"s_cmp_eq_u32 {sTK}, 1"); A("s_cbranch_scc0 L_mail2")
            A(f"ds_read_b32 v{U}, v{vCA}")
            A(f"s_sub_u32 {sCAP}, {sCAP}, 1"); A("s_cbranch_scc0 L_mail")
            A("s_branch L_end")
            A("L_mail2:")
            A(f"s_sub_u32 {sTK}, {sTK}, 2"); A("s_cbranch_scc0 L_have")
            A(f"s_mov_b32 {sTK}, 1"); A(f"s_atomic_add {sTK}, {sCT}, 0 glc")
            A("s_waitcnt lgkmcnt(0)")
            A(f"s_min_u32 {sTK}, {sTK}, {MEM*NL}")
            A(f"s_add_u32 s18, {sTK}, 2"); A(f"v_mov_b32 v{U}, s18")
            A(f"ds_write_b32 v{vCA}, v{U}")
            A("L_have:")
            A("s_mov_b64 exec, -1")
            A(f"v_add_u32 v{vCA}, 4, v{vCA}")
        else:
            if not early and dbg not in (2,3): A(f"s_mov_b32 {sTK}, 1"); A(f"s_atomic_add {sTK}, {sCT}, 0 glc")
            A("s_waitcnt lgkmcnt(0)")
            if dbg:
                if dbg==2: A(f"s_mul_i32 {sTK}, {sLH}, 0x9e3779"); A(f"s_lshr_b32 {sTK}, {sTK}, 11"); A(f"s_add_u32 {sTK}, {sTK}, {sM}"); A(f"s_and_b32 {sTK}, {sTK}, 7")
                else: A(f"s_mov_b32 {sTK}, {sM}")
                A(f"s_add_u32 {sTK}, {sTK}, s4"); A("s_add_u32 s4, s4, 8")
        A(f"s_cmp_ge_u32 {sTK}, {MEM*NL}"); A("s_cbranch_scc1 L_last")
        A(f"s_add_u32 {sFL}, {sTK}, {sHX}")
        sperm(sT, sFL, mb)
        if all(z==1 for z in LV):
            A(f"s_lshr_b32 {sS}, {sTK}, 3"); A(f"s_add_u32 {sS}, {sS}, {ST}"); A(f"s_mov_b32 {sR}, 0")
        else:
            A(f"s_mov_b32 {sS}, {tstart[0]}"); A(f"s_mov_b32 {sR}, {LV[0]-1}")
            for L in range(1,NL):
                A(f"s_cmp_ge_u32 {sTK}, {MEM*L}"); A(f"s_cselect_b32 {sS}, {tstart[L]}, {sS}")
                if LV[L]!=LV[L-1]: A(f"s_cselect_b32 {sR}, {LV[L]-1}, {sR}")
        A("s_branch L_loop")
    A("L_last:"); ev(0); ev(1)
    if fin:
        C("the wave's own closing tiles go out at once, beside the tile already in flight")
        A(f"s_add_u32 {sFL}, {sHX}, s2"); sperm(sT, sFL, mb)
        for i in range(fin):
            A(f"v_readlane_b32 {sOFF}, v{vTAB}, {64-fin+i}"); A("s_nop 0"); A(f"s_or_b32 {sOFF}, {sOFF}, {sT}")
            for j in range(4): loadK(j,KB2+32*i)
            for e in range(4): loadV(e,KB2+32*i+16)
        tile(True, extra=8*fin)
        for i in range(fin): tile(True, KB2+32*i, KB2+32*i+16, extra=8*(fin-1-i))
    elif late:
        C("what the wave's own slot holds now (only its owner ever writes it)")
        A(f"s_lshl_b32 s18, {sM}, 9"); A(f"s_add_u32 {sSL}, {sSL}, s18")
        A(f"buffer_load_dwordx2 {vr(QB,2)}, v{vPA}, {sX}, {sSL} offen {opl}")
        tile(True, extra=1)
    else: tile(True)
    if trace: A(f"s_add_u32 {sN}, {sN}, {1+fin}")
    if stamp: A("s_memrealtime s[50:51]")
    C("contract with phi_q, then fold the four lane groups")
    if late:
        A("s_waitcnt vmcnt(0)")
        A(f"v_not_b32 v{QB}, v{QB}"); A(f"v_not_b32 v{QB+1}, v{QB+1}"); A(f"v_and_b32 v{QB}, 1, v{QB}")
        A("s_nop 2")
    else: A("s_nop 6")
    N=T
    A(f"v_mul_f32 v{U}, v{PQ}, v{Z}")
    for jj in range(8):
        A(f"v_mul_f32 v{N+jj}, v{PQ}, v{AC+4*jj}")
    for r in range(1,4):
        A(f"v_fmac_f32 v{U}, v{PQ+r}, v{Z+r}")
        for jj in range(8): A(f"v_fmac_f32 v{N+jj}, v{PQ+r}, v{AC+4*jj+r}")
    A(f"v_mov_b32 v{U+1}, v{U}")
    A("s_nop 0")
    for jj in range(4): A(f"v_permlane32_swap_b32 v{N+jj}, v{N+jj+4}")
    A(f"v_permlane32_swap_b32 v{U}, v{U+1}")
    A("s_nop 1")
    A(f"v_add_f32 v{U}, v{U}, v{U+1}")
    for jj in range(4): A(f"v_add_f32 v{N+jj}, v{N+jj}, v{N+jj+4}")
    A(f"v_mov_b32 v{U+1}, v{U}")
    A("s_nop 0")
    for jj in range(2): A(f"v_permlane16_swap_b32 v{N+jj}, v{N+jj+2}")
    A(f"v_permlane16_swap_b32 v{U}, v{U+1}")
    A("s_nop 1")
    for jj in range(2): A(f"v_add_f32 v{N+jj}, v{N+jj}, v{N+jj+2}")
    A(f"v_add_f32 v{N+2}, v{U}, v{U+1}")
    if hand:
        A(f"s_cmp_eq_u32 {sM}, 0"); A("s_cbranch_scc1 L_poll0")
        C("publish: bit0 of every word = flipped old bit, bit1 of the first word = one bit of den")
        A(f"v_lshrrev_b32 v{U}, v{vL}, v{N+2}")
        OW=QB if late else OLD
        A(f"v_lshl_or_b32 v{U}, v{U}, 1, v{OW}")
        A(f"v_bfi_b32 v{N}, 3, v{U}, v{N}")
        A(f"v_bfi_b32 v{N+1}, 1, v{OW+1}, v{N+1}")
        ev(2)
        A(f"buffer_store_dwordx2 {vr(N,2)}, v{vPA}, {sX}, {sSL} offen sc1")
        ev(3); ev(4); ev(5); ev(6)
        if trace: A(f"s_mov_b32 {sTK}, 0")
        A("s_branch L_fin")
        A("L_poll0:")
        ev(2); ev(3)
        if trace: A(f"s_mov_b32 {sTK}, 7")
        S=N+4
        def pl(base):
            for s in range(1,8): A(f"buffer_load_dwordx2 {vr(base+2*s,2)}, v{vPA}, {sX}, {sSL} offen offset:{512*s} sc1")
        def pc(base, extra):
            A(f"v_mov_b32 v{S}, v{N}"); A(f"v_mov_b32 v{S+1}, v{N+1}"); A(f"v_mov_b32 v{S+2}, v{N+2}"); A(f"v_mov_b32 v{U+1}, 1")
            for s in range(1,8):
                w0=base+2*s; w1=w0+1
                A(f"s_waitcnt vmcnt({7-s+extra})")
                A(f"v_and_b32 v{U}, 2, v{w0}")
                A(f"v_cmp_ne_u32 vcc, 0, v{U}")
                A(f"v_xor_b32 v{U+2}, v{w0}, v{OLD+2*s-2}"); A(f"v_xor_b32 v{U+3}, v{w1}, v{OLD+2*s-1}")
                A(f"v_add_f32 v{S+2}, vcc_lo, v{S+2}")
                A(f"v_and_b32 v{U+1}, v{U+1}, v{U+2}"); A(f"v_and_b32 v{U+1}, v{U+1}, v{U+3}")
                A(f"v_and_b32 v{U+2}, -4, v{w0}"); A(f"v_and_b32 v{U+3}, -2, v{w1}")
                A(f"v_add_f32 v{S}, v{S}, v{U+2}"); A(f"v_add_f32 v{S+1}, v{S+1}, v{U+3}")
            A(f"v_cmp_eq_u32 vcc, 0, v{U+1}")
            A("s_nop 4")
            A("s_cbranch_vccz L_sum")
        if poll==1:
            A("L_poll:")
            ev(4)
            pl(AC); pc(AC,0)
            if psleep: A(f"s_sleep {psleep}")
        else:
            pl(AC)
            A("L_poll:")
            ev(4)
            pl(AC+16); pc(AC,7)
            pl(AC); pc(AC+16,7)
        A(f"s_sub_u32 {sCAP}, {sCAP}, 1"); A("s_cbranch_scc0 L_poll")
        A("s_branch L_end")
        A("L_sum:")
        N=S
    else:
        A(f"v_lshrrev_b32 v{U}, v{vL}, v{N+2}")
        A(f"v_bfi_b32 v{N}, 1, v{U}, v{N}")
        A(f"s_lshl_b32 s18, {sM}, 9"); A(f"s_add_u32 s18, s18, {sSL}")
        ev(2)
        A(f"buffer_store_dwordx2 {vr(N,2)}, v{vPA}, {sX}, s18 offen sc1")
        A(f"s_mov_b32 {sTK}, 1")
        A("s_waitcnt vmcnt(0)")
        ev(3)
        A(f"s_atomic_add {sTK}, {sAR}, 4 glc")
        A("s_waitcnt lgkmcnt(0)")
        ev(4); ev(5); ev(6)
        A(f"s_cmp_lg_u32 {sTK}, {MEM-1}"); A("s_cbranch_scc1 L_fin")
        for s in range(8):
            A(f"buffer_load_dwordx2 {vr(AC+4*s,2)}, v{vPA}, {sX}, {sSL} offen offset:{s*512} sc1")
        for s in range(8):
            A(f"s_waitcnt vmcnt({7-s})")
            A(f"v_and_b32 v{U}, 1, v{AC+4*s}")
            A(f"v_cmp_ne_u32 vcc, 0, v{U}")
            if s==0: A(f"v_mov_b32 v{N}, v{AC}"); A(f"v_mov_b32 v{N+1}, v{AC+1}"); A(f"v_mov_b32 v{N+2}, vcc_lo")
            else: A(f"v_add_f32 v{N}, v{N}, v{AC+4*s}"); A(f"v_add_f32 v{N+1}, v{N+1}, v{AC+4*s+1}"); A(f"v_add_f32 v{N+2}, vcc_lo, v{N+2}")
    ev(5)
    C("out = bf16( bf16(num) / bf16(bf16(den) + eps) )")
    rnd4(N)
    A(f"v_add_f32 v{N+2}, {sEPS}, v{N+2}")
    A(f"v_cvt_pk_bf16_f32 v{N+2}, v{N+2}, v{N+2}"); A(f"v_lshlrev_b32 v{N+2}, 16, v{N+2}")
    D=N+2
    for i in range(2):
        n=N+i; a,b2,c,d2,e=U,U+1,U+2,U+3,U+4
        A(f"v_div_scale_f32 v{a}, s[6:7], v{D}, v{D}, v{n}")
        A(f"v_div_scale_f32 v{b2}, vcc, v{n}, v{D}, v{n}")
        A(f"v_rcp_f32 v{c}, v{a}")
        A("s_nop 0")
        A(f"v_fma_f32 v{d2}, -v{a}, v{c}, 1.0")
        A(f"v_fma_f32 v{c}, v{d2}, v{c}, v{c}")
        A(f"v_mul_f32 v{d2}, v{b2}, v{c}")
        A(f"v_fma_f32 v{e}, -v{a}, v{d2}, v{b2}")
        A(f"v_fma_f32 v{d2}, v{e}, v{c}, v{d2}")
        A(f"v_fma_f32 v{a}, -v{a}, v{d2}, v{b2}")
        A(f"v_div_fmas_f32 v{a}, v{a}, v{c}, v{d2}")
        A(f"v_div_fixup_f32 v{n}, v{a}, v{D}, v{n}")
    A(f"v_cvt_pk_bf16_f32 v{N}, v{N}, v{N+1}")
    ev(6)
    A(f"buffer_store_dword v{N}, v{vQA}, {sQ}, {sQO} offen {opol}")
    A("L_fin:")
    if stamp:
        A("s_waitcnt vmcnt(0)")
        A("s_memrealtime s[52:53]"); A("s_memtime s[58:59]")
        A("s_getreg_b32 s54, hwreg(HW_REG_XCC_ID)")
        A("s_getreg_b32 s55, hwreg(HW_REG_HW_ID)")
        A("s_waitcnt lgkmcnt(0)")
        A("s_add_u32 s28, s16, 0x20000000"); A("s_addc_u32 s29, s17, 0"); A("s_mov_b32 s30, 0x1000000")
        A(f"s_mul_i32 s18, s2, {W}"); A(f"s_add_u32 s18, s18, {sW}"); A("s_lshl_b32 s18, s18, 6")
        for i in range(16): A(f"v_mov_b32 v{AC+i}, s{48+i}")
        A(f"v_mov_b32 v{U}, 0")
        for i in range(4): A(f"buffer_store_dwordx4 {vr(AC+4*i,4)}, v{U}, {sX}, s18 offen offset:{16*i}")
        if trace:
            A(f"v_writelane_b32 v{TR}, s50, 62"); A(f"v_writelane_b32 v{TR}, s54, 61"); A(f"v_writelane_b32 v{TR}, s55, 60"); A(f"v_writelane_b32 v{TR}, {sN}, 59")
            for i in range(8): A(f"v_writelane_b32 v{TR}, s{80+2*i}, {48+i}")
            A(f"v_writelane_b32 v{TR}, s100, 56")
            A(f"v_writelane_b32 v{TR}, s98, 44"); A(f"v_writelane_b32 v{TR}, s100, 45"); A(f"v_writelane_b32 v{TR}, s60, 46"); A(f"v_writelane_b32 v{TR}, s62, 47")
            A(f"v_writelane_b32 v{TR}, s52, 57"); A(f"v_writelane_b32 v{TR}, {sTK}, 58")
            A("s_lshl_b32 s18, s18, 2"); A("s_add_u32 s18, s18, 0x100000"); A(f"v_lshlrev_b32 v{U}, 2, v{vL}")
            A(f"buffer_store_dword v{TR}, v{U}, {sX}, s18 offen")
    A("L_end:"); A("s_endpgm")
    acc=min(256,(nv+3)//4*4)
    A('.section .rodata,"a"'); A(".p2align 6"); A(f".amdhsa_kernel {KN}")
    A(f"  .amdhsa_next_free_vgpr {nv}"); A(f"  .amdhsa_next_free_sgpr {102 if (trace or rt) else 80}"); A(f"  .amdhsa_accum_offset {acc}")
    A("  .amdhsa_group_segment_fixed_size 0"); A("  .amdhsa_kernarg_size 56"); A("  .amdhsa_user_sgpr_count 2"); A("  .amdhsa_user_sgpr_kernarg_segment_ptr 1"); A("  .amdhsa_system_sgpr_workgroup_id_x 1")
    A("  .amdhsa_float_denorm_mode_32 3")
    A(".end_amdhsa_kernel")
    return "\n".join(o)+"\n"
if __name__=="__main__":
    from build import build
    import os
    os.makedirs("k",exist_ok=True)
    names=[]
    for spec in sys.argv[1:]:
        kw={}
        for p in spec.split(","):
            k,v=p.split("=")
            kw[k]= v if k in ("LV","pat","RK") else int(v) if v.isdigit() else v.replace("+"," ").replace("none","")
        name="k/g6_"+spec.replace("=","").replace(",","_").replace("+","")
        open(name+".s","w").write(gen(**kw))
        build(name+".s")
        names.append(name)
    print(" ".join(names))
```

```python
import gen6, sys
hdr = """; Kernarg layout for this problem (56 bytes, ptrs only, base s[0:1]):
;
; FAVOR+ linear-attention decode, one launch, HBM-bound (K and V are streamed once, nt loads).
"""
gen6.HDR = hdr
s = gen6.gen(wgc=0, hand=1, poll=2, RK="43322110", nb=8, kpos=4, onlyadd=2)
out=[]
for l in s.split("\n"):
    if l and not l.startswith((";",".","L_","standalone"," ")) : l="    "+l
    elif l.startswith("; ") and out and not out[-1].startswith(";") and "launch" not in l: l="    "+l
    out.append(l)
open(sys.argv[1],"w").write("\n".join(out))
```
